```python
import torch

def _softmax(x, axis=-1):
    return torch.softmax(x, dim=axis)
def _gelu(x):
    return torch.nn.functional.gelu(x, approximate="tanh")
def _silu(x):
    return torch.nn.functional.silu(x)
def _sigmoid(x):
    return torch.sigmoid(x)
def _layernorm(x, axis=-1, eps=1e-5):
    m = x.mean(dim=axis, keepdim=True)
    v = x.var(dim=axis, keepdim=True, unbiased=False)
    return (x - m) / torch.sqrt(v + eps)
def _scatter_add(tgt, idx, src, axis=0):
    return tgt.clone().index_add_(axis, idx, src)
def _segment_sum(src, seg, n):
    out = torch.zeros((n,) + src.shape[1:], dtype=src.dtype)
    return out.index_add_(0, seg, src)
def _pad(x, pw):
    flat = tuple(v for pair in reversed(pw) for v in pair)
    return torch.nn.functional.pad(x, flat)

kernel_name = 'recurrent_scan__spectral_gfnet__mixer_s_mlp__prompt'

def setup_inputs():

    _w = (lambda a: (lambda t: t.to(torch.bfloat16) if t.is_floating_point() else t)(torch.as_tensor(a)))
    def _A_setup():
        B, S, D = 1, 2048, 512
        Df = D // 2 + 1
        return {
            "x": _w((lambda *s: torch.randn(*s, dtype=torch.bfloat16) * 0.05)(B, S, D)),
            "w_r": _w((lambda *s: torch.randn(*s, dtype=torch.bfloat16) * 0.2)(S, Df) * 0.02),
            "w_i": _w((lambda *s: torch.randn(*s, dtype=torch.bfloat16) * 0.2)(S, Df) * 0.02),
        }
    _A_in = _A_setup()

    def _B_setup():
        B, S, D, F = 1, 2048, 512, 1792
        return {
            "x":  _w((lambda *s: torch.randn(*s, dtype=torch.bfloat16) * 0.05)(B, S, D)),
            "w1": _w((lambda *s: torch.randn(*s, dtype=torch.bfloat16) * 1.6)(D, D) * (D ** -0.5)),
            "w2": _w((lambda *s: torch.randn(*s, dtype=torch.bfloat16) * 1.6)(D, D) * (D ** -0.5)),
            "w3": _w((lambda *s: torch.randn(*s, dtype=torch.bfloat16) * 1.6)(D, F) * (D ** -0.5)),
            "w4": _w((lambda *s: torch.randn(*s, dtype=torch.bfloat16) * 1.6)(F, D) * (F ** -0.5)),
        }
    _B_in = _B_setup()

    return {
        "A_x": _A_in["x"],
        "A_w_r": _A_in["w_r"],
        "A_w_i": _A_in["w_i"],
        "B_x": _B_in["x"],
        "B_w1": _B_in["w1"],
        "B_w2": _B_in["w2"],
        "B_w3": _B_in["w3"],
        "B_w4": _B_in["w4"],
    }

def reference(A_x, A_w_r, A_w_i, B_x, B_w1, B_w2, B_w3, B_w4):
    def _A_ref(x, w_r, w_i):
        B, S, D = x.shape
        X = (lambda x, axes=(-2,-1): torch.fft.rfft2(x.float(), dim=axes))(x, axes=(-2, -1))
        W = w_r + 1j * w_i
        X = X * W
        y = (lambda x, s, axes=(-2,-1): torch.fft.irfft2(x, s=s, dim=axes).to(torch.bfloat16))(X, (S, D), axes=(-2, -1))
        return y

    def _B_ref(x, w1, w2, w3, w4):
        B, S, D = x.shape
        h = _gelu(_layernorm(x, axis=-1) @ w1)
        c = D // 4
        g0 = _pad(h[:, :, 0*c:1*c], ((0, 0), (1, 0), (0, 0)))[:, :S, :]
        g1 = _pad(h[:, :, 1*c:2*c], ((0, 0), (0, 1), (0, 0)))[:, 1:, :]
        g2 = _pad(h[:, :, 2*c:3*c], ((0, 0), (2, 0), (0, 0)))[:, :S, :]
        g3 = _pad(h[:, :, 3*c:   ], ((0, 0), (0, 2), (0, 0)))[:, 2:, :]
        hs = torch.concatenate([g0, g1, g2, g3], axis=-1) @ w2
        x1 = x + hs
        h2 = _gelu(_layernorm(x1, axis=-1) @ w3) @ w4
        return x1 + h2

    x = A_x
    xn = _layernorm(x, axis=-1)
    s = _A_ref(xn, A_w_r, A_w_i)
    g = _silu(_B_ref(xn, B_w1, B_w2, B_w3, B_w4))
    return x + s * g
```

```python
import re, struct

def f2h(x):
    return "0x%08x" % struct.unpack("<I", struct.pack("<f", float(x)))[0]

def vr(n, c=1, p="v"):
    return f"{p}{n}" if c == 1 else f"{p}[{n}:{n+c-1}]"
def ar(n, c=1): return vr(n, c, "a")
def sr(n, c=1): return vr(n, c, "s")

_REG = re.compile(r"^(-|\|)?(?:abs\()?([vas])(?:(\d+)|\[(\d+):(\d+)\])\)?\|?$")

def regs_of(op):
    op = op.strip()
    if op in ("vcc", "vcc_lo", "vcc_hi"): return {("s", "vcc")}
    if op in ("exec", "exec_lo", "exec_hi"): return {("s", "exec")}
    if op == "m0": return {("s", "m0")}
    m = _REG.match(op)
    if not m: return set()
    t = m.group(2)
    if m.group(3) is not None: return {(t, int(m.group(3)))}
    return {(t, i) for i in range(int(m.group(4)), int(m.group(5)) + 1)}

TRANS = ("v_exp_f32", "v_log_f32", "v_rcp_f32", "v_rsq_f32", "v_sqrt_f32", "v_sin_f32", "v_cos_f32")

class It:
    def __init__(self, kind, text="", **kw):
        self.kind = kind; self.text = text; self.__dict__.update(kw)
        if kind == "ins": self._parse()
    def _parse(self):
        t = self.text.strip()
        parts = t.split(None, 1)
        self.op = parts[0]
        rest = parts[1] if len(parts) > 1 else ""
        ops = []; depth = 0; cur = ""
        for ch in rest:
            if ch in "[(": depth += 1
            if ch in "])": depth -= 1
            if ch == "," and depth == 0: ops.append(cur.strip()); cur = ""
            else: cur += ch
        if cur.strip(): ops.append(cur.strip())
        mods = ""
        if ops:
            last = ops[-1].split(None, 1)
            ops[-1] = last[0]; mods = last[1] if len(last) > 1 else ""
        self.ops = ops; self.mods = mods
        op = self.op; R = set(); W = set()
        g = lambda i: regs_of(ops[i]) if i < len(ops) else set()
        allr = lambda a: set().union(*[g(i) for i in range(a, len(ops))]) if len(ops) > a else set()
        self.cls = "other"; self.cnt = None; self.passes = 0
        if op.startswith("v_mfma"):
            self.cls = "mfma"; W = g(0); self.A = g(1); self.B = g(2); self.C = g(3); R = self.A | self.B | self.C
            self.passes = 8 if "32x32" in op else 4
            if "4x4x4" in op: self.passes = 2
        elif op.startswith("v_"):
            self.cls = "valu"
            if op.startswith("v_cmp"): W = g(0); R = allr(1)
            elif op.startswith("v_permlane") and "swap" in op: W = g(0) | g(1); R = set(W)
            elif op.startswith("v_readfirstlane") or op.startswith("v_readlane"): W = g(0); R = allr(1)
            elif op.startswith(("v_add_co", "v_sub_co", "v_addc_co", "v_subb_co")): W = g(0) | g(1); R = allr(2)
            elif op.startswith(("v_fmac", "v_dot2c", "v_pk_fmac")): W = g(0); R = allr(0)
            elif op == "v_nop": pass
            else:
                W = g(0); R = allr(1)
            self.trans = op.replace("_e32", "").replace("_e64", "") in TRANS
            self.dpp = ("dpp" in op) or any(k in mods for k in ("quad_perm", "row_shr", "row_shl", "row_ror", "row_bcast", "row_mirror", "row_half_mirror", "row_newbcast"))
        elif op.startswith("ds_"):
            self.cls = "ds"; self.cnt = "lgkm"
            if op.startswith("ds_read") or op.startswith("ds_bpermute") or op.startswith("ds_swizzle"): W = g(0); R = allr(1)
            else: R = allr(0)
        elif op.startswith("buffer_") or op.startswith("global_"):
            self.cls = "vmem"; self.cnt = "vm"
            self.lds = " lds" in (" " + mods)
            if op.startswith("buffer_load") and not self.lds: W = g(0); R = allr(1)
            elif op.startswith("buffer_atomic") and "sc0" in mods: W = g(0); R = allr(0)
            else: R = allr(0)
            if self.lds: R = R | {("s", "m0")}
            self.wide_store = op.startswith("buffer_store") and (op.endswith("x4") or op.endswith("x3"))
            self.data = g(0) if op.startswith("buffer_store") else set()
        elif op.startswith("s_load") or op.startswith("s_memtime") or op.startswith("s_memrealtime"):
            self.cls = "smem"; self.cnt = "smem"; W = g(0); R = allr(1)
        elif op.startswith("s_"):
            self.cls = "salu"
            if op.startswith(("s_cmp", "s_cbranch", "s_branch", "s_barrier", "s_waitcnt", "s_nop", "s_sleep", "s_endpgm", "s_setprio", "s_bitcmp")):
                R = allr(0)
            else:
                W = g(0); R = allr(1)
                if "saveexec" in op: W = W | {("s", "exec")}
        self.R = R; self.W = W

def I(text, **kw): return It("ins", text, **kw)
def Label(name): return It("label", name)
def Wait(*toks): return It("wait", toks=[t for t in toks if t is not None])
def WaitAll(vm=True, lgkm=True): return It("waitall", vm=vm, lgkm=lgkm)
def Raw(text): return It("raw", text)
def Cmt(text): return It("raw", "; " + text)

class Regs:
    def __init__(self, n, name):
        self.n = n; self.used = [False] * n; self.name = name; self.hw = 0
    def alloc(self, c=1, align=None, at=None):
        if align is None: align = 1 if c == 1 else (2 if c == 2 else 4)
        if at is not None:
            assert not any(self.used[at:at + c]) and at + c <= self.n, f"{self.name}{at} busy"
            s = at
        else:
            s = 0
            while True:
                if s + c > self.n: raise RuntimeError(f"out of {self.name} regs (want {c})")
                if not any(self.used[s:s + c]): break
                s += align
        for i in range(s, s + c): self.used[i] = True
        self.hw = max(self.hw, s + c)
        return s
    def free(self, s, c=1):
        for i in range(s, s + c):
            assert self.used[i], f"double free {self.name}{i}"
            self.used[i] = False
    def nfree(self): return self.used.count(False)

class Prog:
    def __init__(self):
        self.items = []
    def __call__(self, x, **kw):
        if isinstance(x, str): x = I(x, **kw)
        if isinstance(x, Atom):
            self.items.append(x); return x
        if isinstance(x, (list, tuple)):
            for y in x: self(y)
            return x
        self.items.append(x); return x
    def wait(self, *toks): self(Wait(*toks))
    def cap(self, fn):
        keep = self.items; self.items = []
        try: fn()
        finally:
            got = self.items; self.items = keep
        return got
    def label(self, n): self(Label(n))
    def skip_begin(self): self(It("skip_begin"))
    def skip_end(self): self(It("skip_end"))

    def atom(self, fn): return Atom(flat(self.cap(fn)))
    def resolve(self):
        self.items = flat(self.items)
        out = []
        seq = {"vm": [], "lgkm": []}
        done = {"vm": 0, "lgkm": 0}
        smem_pending = False
        region = 0; nreg = 0; stack = []
        MAXN = {"vm": 62, "lgkm": 14}
        def emit(vm=None, lg=None):
            p = []
            if vm is not None: p.append(f"vmcnt({vm})")
            if lg is not None: p.append(f"lgkmcnt({lg})")
            if p: out.append(I("s_waitcnt " + " ".join(p)))
        for it in self.items:
            if it.kind == "ins":
                out.append(it)
                if it.cnt in ("vm", "lgkm"):
                    it.idx = len(seq[it.cnt]); it.region = tuple(s[0] for s in stack); seq[it.cnt].append(it)
                elif it.cnt == "smem":
                    smem_pending = True; it.smem_done = False
            elif it.kind == "skip_begin":
                nreg += 1; stack.append((nreg, dict(done), smem_pending))
            elif it.kind == "skip_end":
                r, d0, sp = stack.pop()
                for c in done:
                    for o in seq[c][:done[c]]:
                        if r in o.region: o.finished = True
                    done[c] = d0[c]
                smem_pending = smem_pending or sp
            elif it.kind == "waitall":
                emit(0 if it.vm else None, 0 if it.lgkm else None)
                if it.vm: done["vm"] = len(seq["vm"])
                if it.lgkm: done["lgkm"] = len(seq["lgkm"]); smem_pending = False
            elif it.kind == "wait":
                need = {}
                for t in it.toks:
                    if t.cnt == "smem":
                        if smem_pending: need["lgkm0"] = True
                        continue
                    assert hasattr(t, "idx"), f"wait on not-yet-issued op: {t.text}"
                    if t.idx < done[t.cnt] or getattr(t, "finished", False): continue
                    if t.cnt not in need or t.idx > need[t.cnt].idx: need[t.cnt] = t
                vm = lg = None
                cur = tuple(s[0] for s in stack)
                for c in ("vm", "lgkm"):
                    if c in need:
                        t = need[c]
                        n = sum(1 for o in seq[c][t.idx + 1:] if all((r in t.region or r in cur) for r in o.region))
                        allc = n == len(seq[c]) - t.idx - 1
                        n = min(n, MAXN[c])
                        if c == "vm": vm = n
                        else: lg = n
                        done[c] = max(done[c], len(seq[c]) - n if allc else t.idx + 1)
                if "lgkm0" in need or (lg is not None and smem_pending):
                    lg = 0; done["lgkm"] = len(seq["lgkm"]); smem_pending = False
                emit(vm, lg)
            else:
                out.append(it)
        self.items = out

    @staticmethod
    def need(p, c):
        n = 0
        isv = lambda s: {r for r in s if r[0] in "va"}
        iss = lambda s: {r for r in s if r[0] == "s"}
        if p.cls == "valu":
            wv = isv(p.W); ws = iss(p.W)
            if c.cls == "mfma" and wv & c.R: n = max(n, 2)
            if c.cls == "valu":
                if p.trans and wv & c.R: n = max(n, 1)
                if p.op.startswith("v_dot") and c.op != p.op and wv & (c.R | c.W): n = max(n, 3)
                if c.op.startswith(("v_readfirstlane", "v_readlane")) and wv & c.R: n = max(n, 1)
                if c.op.startswith("v_permlane") and wv & c.R: n = max(n, 2)
                if c.dpp and wv & c.R: n = max(n, 2)
                if ws & c.R: n = max(n, 2)
                if ("s", "vcc") in ws and c.op.startswith("v_cndmask") and len(c.ops) == 3: n = max(n, 2)
                if ("s", "exec") in ws: n = max(n, 5)
            if p.trans and c.cls in ("ds", "vmem") and wv & c.R: n = max(n, 1)
            if c.cls == "vmem" and ws & c.R: n = max(n, 5)
            if c.cls == "mfma" and ("s", "exec") in ws: n = max(n, 4)
        elif p.cls == "mfma":
            big = {2: 5, 4: 8, 8: 12, 16: 20}[p.passes]
            if c.cls == "mfma":
                if p.W & (c.A | c.B): n = max(n, big)
                if p.W & c.C:
                    if not (p.W == c.C and p.passes == c.passes): n = max(n, {2: 4, 4: 6, 8: 10, 16: 18}[p.passes])
                    elif p.passes == 2: n = max(n, 2)
                elif p.W & c.W: n = max(n, big)
            elif c.cls in ("valu", "ds", "vmem"):
                if p.W & (c.R | c.W): n = max(n, big)
                if c.cls == "valu" and p.C & c.W: n = max(n, {2: 1, 4: 3, 8: 7, 16: 15}[p.passes])
        elif p.cls == "vmem":
            if p.wide_store and p.data & c.W: n = max(n, 2)
        elif p.cls == "salu":
            if ("s", "m0") in p.W and c.cls == "vmem" and c.lds: n = max(n, 1)
        return n

    def hazards(self):
        out = []
        hist = []
        at_branch = {}
        for it in self.items:
            if it.kind == "label":
                for h in at_branch.pop(it.text, []):
                    d = {id(a): e for a, e in hist}
                    for a, e in h:
                        if id(a) in d:
                            hist = [(x, min(y, e)) if x is a else (x, y) for x, y in hist]
                        else: hist.append((a, e))
                out.append(it); continue
            if it.kind != "ins":
                out.append(it); continue
            pad = 0
            for p, e in hist:
                pad = max(pad, self.need(p, it) - e)
            while pad > 0:
                k = min(pad, 16)
                out.append(I(f"s_nop {k-1}"))
                hist = [(p, e + k) for p, e in hist]; pad -= k
            out.append(it)
            w = 1
            if it.op == "s_nop": w = int(it.ops[0]) + 1
            hist = [(p, e + w) for p, e in hist if e + w < 24]
            if it.cls in ("valu", "mfma", "vmem", "salu"): hist.append((it, 0))
            if it.op.startswith(("s_cbranch", "s_branch")):
                at_branch.setdefault(it.ops[0], []).append(list(hist))
        self.items = out

    def text(self):
        o = []
        for it in self.items:
            if it.kind == "label": o.append(it.text + ":")
            elif it.kind == "raw": o.append(it.text)
            elif it.kind == "ins": o.append("    " + it.text)
        return "\n".join(o) + "\n"

def interleave(main, fill, start=0, per=None):
    out = []; fi = 0
    n = len(main) - start
    for i, m in enumerate(main):
        out.append(m)
        if i >= start:
            want = per * (i - start + 1) if per else (len(fill) * (i - start + 1) + n - 1) // n
            while fi < min(want, len(fill)):
                out.append(fill[fi]); fi += 1
    out.extend(fill[fi:])
    return out

class Atom(list):
    kind = "atom"

def flat(l):
    o = []
    for x in l:
        if isinstance(x, (list, tuple)): o += flat(x)
        else: o.append(x)
    return o

def atomize(l):
    out = []
    for x in l:
        rd = x.kind == "ins" and x.op.startswith(("s_cselect", "s_cbranch_scc", "s_addc"))
        if rd:
            prev = out.pop()
            out.append(Atom((list(prev) if isinstance(prev, Atom) else [prev]) + [x]))
        else: out.append(x)
    return out

def cost(it):
    if isinstance(it, list): return sum(cost(x) for x in it)
    if it.kind != "ins": return 4 if it.kind in ("wait", "waitall") else 0
    if it.cls == "mfma": return 8
    if it.cls == "valu" and it.trans: return 8
    return 4

def sched(main, vm=None, gap=72, t0=0, fill=None, even=False, fill_start=0, drain=True, drain_vm=None, at=None):
    vm = vm if vm is not None else []; fill = fill if fill is not None else []
    at = sorted(at or [], key=lambda x: x[0])
    main = atomize(main); fill[:] = atomize(fill)
    if drain_vm is None: drain_vm = drain
    out = []; t = 0; pipe = 0; nxt = t0
    ism = lambda x: x.kind == "ins" and x.cls == "mfma"
    nm = sum(1 for x in main if ism(x))
    tot = sum(cost(x) for x in fill); used = 0; seen = 0
    def put(x):
        nonlocal t
        out.append(x); t += cost(x)
    def vmtry():
        nonlocal nxt
        if at and t >= at[0][0]:
            put(at.pop(0)[1]); return True
        if vm and t >= nxt:
            g = vm.pop(0)
            nxt = t + gap
            put(g)
            return True
        return False
    for it in main:
        if ism(it):
            while True:
                if vmtry(): continue
                if fill and seen > fill_start:
                    c = cost(fill[0])
                    ok = (used + c / 2 <= tot * (seen - fill_start) / max(1, nm - fill_start - 1)) if even else (t + c <= pipe)
                    if ok:
                        used += c; put(fill.pop(0)); continue
                break
            t = max(t, pipe); out.append(it); pipe = t + 4 * it.passes; t += 8; seen += 1
        else:
            if not (it.kind == "ins" and it.op == "s_barrier"): vmtry()
            put(it)
    while (drain and fill) or (drain_vm and vm) or at:
        if vmtry(): continue
        if drain and fill: put(fill.pop(0))
        else: t += 4
    return flat(out)
```

```python
import sys, math, os
sys.path.insert(0, os.path.dirname(os.path.abspath(__file__)))
from asm import *

KNAME = "recurrent_scan__spectral_gfnet__mixer_s_mlp__prompt_kernel"

WS_G, WS_XF1, WS_X1T, WS_Y1T, WS_WT, WS_H2F = 0x0, 0x200000, 0x400000, 0x600000, 0x800000, 0xA00000
WS_ST1, WS_ST2, WS_CNT = 0x1100000, 0x1110000, 0x1180000
WS_W3P, WS_W4P, WS_STAMP, WS_END = 0x1200000, 0x1400000, 0x1600000, 0x1700000
C_S1A, C_S2A, C_S3, C_FLX, C_FLW, C_FLY, C_P3W, C_P4W = 0, 128, 192, 256, 288, 304, 320, 352
OOB = 0x7f000000
L_XS, L_W1S, L_PP3, L_WS, L_T, L_T2 = 0x0, 0x10000, 0x20000, 0x22000, 0x24000, 0x26000
L_STP, L_FC, L_E, L_ST3, L_PP4, L_XT, L_RST = 0x26000, 0x20000, 0x22000, 0x24000, 0x22000, 0x10000, 0x12000
S_X, S_W1, S_WS, S_WR, S_WI, S_W2, S_W3, S_W4, S_OUT, S_DBG, S_CODE = 4, 8, 12, 16, 20, 24, 28, 32, 36, 40, 44
sW, sR, sCB, sSH, sJ, sG, sA, sB = 48, 49, 50, 51, 52, 53, 54, 55
sT0, sT1, sT2, sT3, sP, sN, sQ, sNB = 56, 57, 58, 59, 60, 61, 62, 63
sERR = 47
sV0, sV1, sV2, sV3, sV4, sV5, sV6, sV7 = 64, 65, 66, 67, 68, 69, 70, 71
STAMP0 = 72
SPIN = 30000
K1 = 2 * math.sqrt(2 / math.pi) * math.log2(math.e)
K2 = K1 * 0.044715
LOG2E = math.log2(math.e)
EPS = 1e-5

class Gen:
    def __init__(self, diag=False, stop=99, want=None, opt=None):
        self.want = want; self.opt = opt or {}
        self.p = Prog(); self.V = Regs(256, "v"); self.diag = diag; self.stop = stop
        self.nlab = 0; self.stamps = []
        self.V.alloc(1, at=0)

    def lab(self, n):
        self.nlab += 1; return f"L_{n}_{self.nlab}"
    def stamp(self, name):
        if self.diag and (self.want is None or name in self.want or name in ("start", "drained")):
            i = len(self.stamps); assert STAMP0 + 2 * i + 1 <= 101
            self.stamps.append(name); self.p(f"s_memrealtime {sr(STAMP0 + 2*i, 2)}")
    def srd(self, s, nbytes):
        self.p(f"s_mov_b32 s{s+2}, {hex(nbytes)}"); self.p(f"s_mov_b32 s{s+3}, 0x20000")
    def dma(self, vaddr, srd, soff, m0_s, m0_imm, imm=0, sc1=False, mid=None):
        p = self.p
        if m0_imm is not None: p(f"s_add_u32 m0, s{m0_s}, {hex(m0_imm & 0xffffffff)}")
        if mid: p(mid)
        return p(f"buffer_load_dwordx4 v{vaddr}, {sr(srd,4)}, {soff} offen" + (f" offset:{imm}" if imm else "") + (" sc1" if sc1 else "") + " lds")
    def cnt_off(self, dst, base, src=None, mul=1):
        p = self.p
        p(f"s_lshl_b32 s{dst}, s{src}, {7 + int(math.log2(mul))}")
        p(f"s_add_u32 s{dst}, s{dst}, {hex(WS_CNT + base*128)}")
    def signal(self, soff, toks):
        p = self.p
        def body():
            p(f"v_mov_b32 v{self.vSig}, s{soff}")
            p.wait(*toks)
            p("s_mov_b64 exec, 1")
            p(f"buffer_atomic_add v{self.vOne}, v{self.vSig}, {sr(S_WS,4)}, 0 offen sc1")
            p("s_mov_b64 exec, -1")
        p(p.atom(body))
    def poll_issue(self, vreg, srd, soff):
        return self.p(f"buffer_load_dword v{vreg}, off, {sr(srd,4)}, {soff} sc1")
    def poll_check(self, tok, vreg, srd, soff, target, errbit):
        self.p(self.p.atom(lambda: self._poll_check(tok, vreg, srd, soff, target, errbit)))
    def _poll_check(self, tok, vreg, srd, soff, target, errbit):
        p = self.p; L = self.lab("pv"); D = self.lab("pvd")
        p.wait(tok)
        p(f"v_readfirstlane_b32 s{sP}, v{vreg}")
        p(f"s_cmp_ge_u32 s{sP}, {target}")
        p(f"s_cbranch_scc1 {D}")
        p.skip_begin()
        p(f"s_mov_b32 s{sN}, {SPIN}")
        p.label(L)
        p(f"buffer_load_dword v{vreg}, off, {sr(srd,4)}, {soff} sc1")
        p(WaitAll(vm=True, lgkm=False))
        p(f"v_readfirstlane_b32 s{sP}, v{vreg}")
        p(f"s_cmp_ge_u32 s{sP}, {target}")
        p(f"s_cbranch_scc1 {D}")
        p(f"s_sub_u32 s{sN}, s{sN}, 1")
        p(f"s_cmp_lg_u32 s{sN}, 0")
        p(f"s_cbranch_scc1 {L}")
        p(f"s_or_b32 s{sERR}, s{sERR}, {1 << errbit}")
        p.skip_end()
        p.label(D)
    def poll_vec(self, soff, target, errbit):
        t = self.poll_issue(self.vSig, S_WS, f"s{soff}")
        self.poll_check(t, self.vSig, S_WS, f"s{soff}", target, errbit)

    def trig_pairs(self, dsts, vf, vbase, consts, mode, tmp):
        out = []
        for n in range(0, len(dsts), 2):
            grp = list(range(n, min(n + 2, len(dsts))))
            for q, i in enumerate(grp):
                b = vbase[i] if isinstance(vbase, list) else vbase
                out.append(I(f"v_fmamk_f32 v{tmp+4*q}, v{vf}, {f2h(consts[i])}, v{b}"))
                if mode == "cc": out.append(I(f"v_add_f32 v{tmp+4*q+1}, v{tmp+4*q}, v{vf}"))
            for q, i in enumerate(grp):
                out.append(I(f"v_cos_f32 v{tmp+4*q+2}, v{tmp+4*q}"))
                if mode == "cc": out.append(I(f"v_cos_f32 v{tmp+4*q+3}, v{tmp+4*q+1}"))
                else: out.append(I(f"v_sin_f32 v{tmp+4*q+3}, v{tmp+4*q}"))
            for q, i in enumerate(grp):
                out.append(I(f"v_cvt_pk_bf16_f32 v{dsts[i]}, v{tmp+4*q+2}, {'-' if mode == 'cs' else ''}v{tmp+4*q+3}"))
        return out

    def gelu_pk(self, acc, cc, dst, tmp):
        out = []
        for g0 in (0, 8):
            P = range(4)
            a = lambda i: vr(acc + g0 + 2*i, 2)
            t = lambda i: vr(tmp + 2*i, 2)
            u = lambda i: vr(tmp + 8 + 2*i, 2)
            for i in P: out.append(I(f"v_pk_mul_f32 {t(i)}, {a(i)}, {a(i)}"))
            for i in P: out.append(I(f"v_pk_fma_f32 {t(i)}, {t(i)}, {vr(cc,2)}, {vr(cc,2)} op_sel:[0,1,0] op_sel_hi:[1,1,0]"))
            for i in P: out.append(I(f"v_pk_mul_f32 {t(i)}, {t(i)}, {a(i)}"))
            for i in range(8): out.append(I(f"v_exp_f32 v{tmp+8+i}, v{tmp+i}"))
            for i in P: out.append(I(f"v_pk_fma_f32 {u(i)}, {u(i)}, {vr(cc+2,2)}, {vr(cc+2,2)} op_sel_hi:[1,0,0]"))
            for i in range(8): out.append(I(f"v_rcp_f32 v{tmp+i}, v{tmp+8+i}"))
            for i in P: out.append(I(f"v_pk_mul_f32 {a(i)}, {a(i)}, {t(i)}"))
            for i in P: out.append(I(f"v_cvt_pk_bf16_f32 v{dst+g0//2+i}, v{acc+g0+2*i}, v{acc+g0+2*i+1}"))
        return out

    def gelu_plain(self, acc, cc, dst, tmp):
        out = []
        for g0 in range(0, 16, 4):
            P = range(4)
            for i in P: out.append(I(f"v_mul_f32 v{tmp+i}, v{acc+g0+i}, v{acc+g0+i}"))
            for i in P: out.append(I(f"v_fma_f32 v{tmp+i}, v{tmp+i}, v{cc+1}, v{cc}"))
            for i in P: out.append(I(f"v_mul_f32 v{tmp+i}, v{tmp+i}, v{acc+g0+i}"))
            for i in P: out.append(I(f"v_exp_f32 v{tmp+4+i}, v{tmp+i}"))
            for i in P: out.append(I(f"v_fma_f32 v{tmp+4+i}, v{tmp+4+i}, v{cc+2}, v{cc+2}"))
            for i in P: out.append(I(f"v_rcp_f32 v{tmp+i}, v{tmp+4+i}"))
            for i in P: out.append(I(f"v_mul_f32 v{acc+g0+i}, v{acc+g0+i}, v{tmp+i}"))
            for i in (0, 2): out.append(I(f"v_cvt_pk_bf16_f32 v{dst+(g0+i)//2}, v{acc+g0+i}, v{acc+g0+i+1}"))
        return out

    def sc(self, dst, *terms, add=0):
        p = self.p; first = True
        for r, sh in terms:
            if first:
                p(f"s_lshl_b32 s{dst}, s{r}, {sh}"); first = False
            elif sh <= 4 and sh >= 1:
                p(f"s_lshl{sh}_add_u32 s{dst}, s{r}, s{dst}")
            elif sh == 0:
                p(f"s_add_u32 s{dst}, s{dst}, s{r}")
            else:
                p(f"s_lshl_b32 s{sT3}, s{r}, {sh}"); p(f"s_add_u32 s{dst}, s{dst}, s{sT3}")
        if add: p(f"s_add_u32 s{dst}, s{dst}, {hex(add)}")

    def build(self):
        p = self.p; V = self.V; O = self.opt.get
        MF = "v_mfma_f32_32x32x16_bf16"
        p(Raw(f"{KNAME}:"))
        self.stamp("start")
        p("s_cmp_ge_u32 s2, 0x100"); p("s_cbranch_scc1 L_end")
        p(f"s_load_dwordx2 {sr(S_X,2)}, s[0:1], 0")
        p(f"s_load_dwordx2 {sr(S_W1,2)}, s[0:1], 32")
        p(f"s_load_dwordx2 {sr(S_WS,2)}, s[0:1], 80")
        for s, off in ((S_WR, 8), (S_WI, 16), (S_W2, 40), (S_W3, 48), (S_W4, 56), (S_OUT, 64), (S_DBG, 72)):
            p(f"s_load_dwordx2 {sr(s,2)}, s[0:1], {off}")
        p(f"s_getpc_b64 {sr(S_CODE,2)}")
        p.label("L_pc")
        p(f"s_mov_b32 s{S_CODE+2}, L_code_end-L_pc"); p(f"s_mov_b32 s{S_CODE+3}, 0x20000")
        p(f"s_lshr_b32 s{sJ}, s2, 3"); p(f"s_and_b32 s{sG}, s2, 7")
        vt = self.vt = V.alloc(8, align=4)
        vx = self.vx = V.alloc(8, align=4); vx1 = self.vx1 = V.alloc(8, align=4)
        vones = self.vones = V.alloc(4); self.vw4 = V.alloc(2)
        vrow = self.vrow = V.alloc(); vL16 = self.vL16 = V.alloc(); vtr0 = self.vtr0 = V.alloc()
        vOne = self.vOne = V.alloc(); vSig = self.vSig = V.alloc()
        vl = V.alloc(); vl31 = V.alloc(); vh = V.alloc(); vo8 = V.alloc(); vl7 = V.alloc(); vu16 = V.alloc()
        self.vl, self.vl31, self.vh, self.vo8, self.vl7, self.vu16 = vl, vl31, vh, vo8, vl7, vu16
        vpl = self.vpl = V.alloc(3, align=1)
        vdum = V.alloc()
        p(f"s_lshl_b32 s{sT0}, s{sJ}, 11"); p(f"v_lshlrev_b32 v{vt}, 3, v0")
        p(f"buffer_load_dword v{vdum}, v{vt}, {sr(S_CODE,4)}, s{sT0} offen")
        p(f"v_lshrrev_b32 v{vt+1}, 6, v0")
        p(f"v_and_b32 v{vl}, 63, v0")
        p(f"v_readfirstlane_b32 s{sW}, v{vt+1}")
        p(f"v_bfe_u32 v{vo8}, v0, 3, 3"); p(f"v_and_b32 v{vl7}, 7, v0")
        p(f"s_lshr_b32 s{sT0}, s{sJ}, 3"); p(f"s_lshl2_add_u32 s{sR}, s{sG}, s{sT0}")
        p(f"s_and_b32 s{sCB}, s{sJ}, 7")
        p(f"s_lshr_b32 s{sT0}, s{sCB}, 2"); p(f"s_add_u32 s{sSH}, s{sT0}, 1")
        p(f"s_sub_u32 s{sT0}, 0, s{sSH}"); p(f"s_bitcmp1_b32 s{sCB}, 1"); p(f"s_cselect_b32 s{sSH}, s{sT0}, s{sSH}")
        vxa = V.alloc(2); vxt = V.alloc(2); vwa = V.alloc()
        self.sc(sT0, (sR, 6), (sW, 4)); p(f"s_sub_u32 s{sT1}, s{sT0}, s{sSH}")
        p(f"v_lshrrev_b32 v{vt}, 1, v{vo8}"); p(f"v_xor_b32 v{vt}, v{vt}, v{vl7}"); p(f"v_lshlrev_b32 v{vt}, 4, v{vt}"); p(f"v_xor_b32 v{vt+1}, 64, v{vt}")
        p(f"v_add_u32 v{vt+2}, s{sT1}, v{vo8}"); p(f"v_add_u32 v{vt+3}, 8, v{vt+2}")
        for e in (0, 1):
            p(f"v_and_b32 v{vt+2+e}, 0x7ff, v{vt+2+e}"); p(f"v_lshl_or_b32 v{vxa+e}, v{vt+2+e}, 10, v{vt+e}")
        p(f"v_and_b32 v{vt+4}, 2, v{vo8}"); p(f"v_lshlrev_b32 v{vt+4}, 1, v{vt+4}"); p(f"v_xor_b32 v{vt+4}, v{vt+4}, v{vl7}"); p(f"v_lshlrev_b32 v{vu16}, 4, v{vt+4}")
        self.sc(sT1, (sW, 14), (sCB, 7))
        p(f"v_lshl_or_b32 v{vwa}, v{vo8}, 10, v{vu16}"); p(f"v_add_u32 v{vwa}, s{sT1}, v{vwa}")
        p(f"s_lshl_b32 s{sV0}, s{sW}, 11")
        self.sc(sT1, (sT0, 10), (sCB, 7))
        for e in (0, 1):
            p(f"v_lshl_or_b32 v{vxt+e}, v{vo8}, 10, v{vt+e}"); p(f"v_add_u32 v{vxt+e}, s{sT1}, v{vxt+e}")
        p(f"v_add_u32 v{vxt+1}, 0x2000, v{vxt+1}")
        self.sc(sT0, (2, 13), add=WS_CNT)
        self.sc(sT1, (sW, 8), (2, 0)); p(f"s_cmp_lt_u32 s{sT1}, 6")
        p(f"s_cselect_b32 s{sT0}, s{sT0}, {hex(OOB)}"); p(f"s_cselect_b32 s{sT2}, 0, {hex(OOB)}")
        p(f"v_lshlrev_b32 v{vt}, 7, v{vl}"); p(f"v_add_u32 v{vt}, s{sT0}, v{vt}"); p(f"v_mov_b32 v{vt+1}, 0")
        p(f"v_mov_b32 v{vSig}, s{sT2}")
        self.srd(S_X, 0x200000); self.srd(S_W1, 0x80000); self.srd(S_WS, WS_END)
        p(WaitAll(vm=False, lgkm=True))
        self.stamp("karg")
        zst = p(f"buffer_store_dword v{vt+1}, v{vt}, {sr(S_WS,4)}, 0 offen sc1")
        tok = {}
        def grp(name, *a, **k):
            def f(): tok[name] = self.dma(*a, **k)
            return p.atom(f)
        xg = lambda kc: [grp(("x", kc), vxa + e, S_X, "0", sV0, L_XS + kc * 8064 + e * 1024, kc * 128) for e in (0, 1)]
        wg = lambda nm, kc, srd, lb: [grp((nm, kc), vwa, srd, f"s{sV1}", sV0, lb + kc * 8192 + e * 1024, mid=f"s_mov_b32 s{sV1}, {hex(kc*65536 + e*8192)}") for e in (0, 1)]
        DM = xg(0)
        for kc in range(8):
            if kc < 7: DM += xg(kc + 1)
            DM += wg("w1", kc, S_W1, L_W1S)
        NF = O("nfirst", 12)
        for g in DM[:NF]: p(g)
        DM = DM[NF:]
        self.stamp("dmas")
        p(f"s_mov_b32 s{sERR}, 0")
        self.srd(S_WR, 2048 * 514); self.srd(S_WI, 2048 * 514); self.srd(S_W2, 0x80000)
        self.srd(S_W3, 512 * 3584); self.srd(S_W4, 1792 * 1024); self.srd(S_OUT, 0x200000); self.srd(S_DBG, 256)
        p(f"s_and_b32 s{sA}, s{sW}, 1"); p(f"s_lshr_b32 s{sB}, s{sW}, 1")
        p(f"v_mov_b32 v{vOne}, 1"); p(f"v_and_b32 v{vl31}, 31, v0"); p(f"v_bfe_u32 v{vh}, v0, 5, 1")
        p(f"v_lshlrev_b32 v{vL16}, 4, v{vl}")
        for i in range(4): p(f"v_mov_b32 v{vones+i}, 0x3f803f80")
        vxb = V.alloc(4); vsb = V.alloc(2); vtrN = V.alloc(); vtrP = V.alloc(2); vtrPa = V.alloc()
        p(f"s_lshl_b32 s{sT0}, s{sB}, 5"); p(f"v_add_u32 v{vt}, s{sT0}, v{vl31}")
        p(f"v_bfe_u32 v{vt+1}, v{vt}, 1, 3"); p(f"v_xor_b32 v{vt+2}, v{vt+1}, v{vh}"); p(f"v_lshlrev_b32 v{vt+2}, 4, v{vt+2}")
        p(f"v_lshl_or_b32 v{vxb}, v{vt}, 7, v{vt+2}")
        for q in (1, 2, 3): p(f"v_xor_b32 v{vxb+q}, {32*q}, v{vxb}")
        vxr = V.alloc()
        p(f"s_lshl_b32 s{sT0}, s{sA}, 2"); p(f"v_xor_b32 v{vt+1}, s{sT0}, v{vt+1}"); p(f"v_lshlrev_b32 v{vt+1}, 4, v{vt+1}")
        p(f"v_lshl_or_b32 v{vt+1}, v{vh}, 3, v{vt+1}"); p(f"v_lshl_or_b32 v{vxr}, v{vt}, 7, v{vt+1}"); p(f"v_add_u32 v{vxr}, {hex(L_XT)}, v{vxr}")
        p(f"s_lshl_b32 s{sT0}, s{sW}, 1"); p(f"v_bfe_u32 v{vt+1}, v{vl}, 1, 3"); p(f"v_xor_b32 v{vt+1}, s{sT0}, v{vt+1}"); p(f"v_lshlrev_b32 v{vt+1}, 4, v{vt+1}")
        p(f"v_lshl_or_b32 v{vsb}, v{vl}, 7, v{vt+1}"); p(f"v_xor_b32 v{vsb+1}, 16, v{vsb}")
        p(f"v_bfe_u32 v{vt}, v{vl}, 4, 1"); p(f"v_lshlrev_b32 v{vt}, 1, v{vt}"); p(f"v_bfe_u32 v{vt+1}, v{vl}, 1, 1"); p(f"v_or_b32 v{vt}, v{vt}, v{vt+1}")
        p(f"v_bfe_u32 v{vt+1}, v{vl}, 3, 1"); p(f"v_lshl_or_b32 v{vt}, v{vt+1}, 2, v{vt}")
        p(f"v_lshlrev_b32 v{vt}, 4, v{vt}"); p(f"v_and_b32 v{vt+1}, 1, v{vl}"); p(f"v_lshl_or_b32 v{vt}, v{vt+1}, 3, v{vt}")
        p(f"v_bfe_u32 v{vt+1}, v{vl}, 2, 2"); p(f"v_lshl_or_b32 v{vtr0}, v{vt+1}, 7, v{vt}")
        p(f"s_lshl_b32 s{sT0}, s{sA}, 6")
        p(f"v_lshl_or_b32 v{vt}, v{vh}, 10, v{vtr0}"); p(f"v_xor_b32 v{vt}, s{sT0}, v{vt}"); p(f"v_add_u32 v{vtrN}, {hex(L_W1S)}, v{vt}")
        p(f"v_lshl_or_b32 v{vt}, v{vh}, 9, v{vtr0}"); p(f"v_xor_b32 v{vtrPa}, s{sT0}, v{vt}")
        p(f"s_add_u32 s{sT0}, s{sV0}, {hex(L_PP3)}")
        p(f"v_add_u32 v{vtrP}, s{sT0}, v{vt}"); p(f"v_xor_b32 v{vtrP+1}, 64, v{vtrP}")
        vtrW = V.alloc()
        p(f"v_lshlrev_b32 v{vt}, 6, v{vh}"); p(f"v_xor_b32 v{vt}, v{vt}, v{vtr0}"); p(f"s_add_u32 s{sT0}, s{sV0}, {hex(L_WS)}"); p(f"v_add_u32 v{vtrW}, s{sT0}, v{vt}")
        v3a = V.alloc(); v4a = V.alloc(); vWa = V.alloc()
        self.sc(sT0, (sG, 6), (sW, 4))
        p(f"v_add_u32 v{vt}, s{sT0}, v{vo8}"); p(f"v_mul_u32_u24 v{vt}, 3584, v{vt}")
        p(f"s_lshl_b32 s{sT0}, s{sJ}, 7"); p(f"v_add3_u32 v{v3a}, v{vt}, s{sT0}, v{vu16}")
        self.sc(sT0, (sJ, 16), (sW, 14), (sG, 7))
        p(f"v_lshl_or_b32 v{vt}, v{vo8}, 10, v{vu16}"); p(f"v_add_u32 v{v4a}, s{sT0}, v{vt}")
        p(f"s_lshr_b32 s{sT0}, s{sJ}, 2"); self.sc(sT0, (sT0, 3), (sW, 1), (sG, 8))
        p(f"v_and_b32 v{vt}, 3, v{vo8}"); p(f"v_lshlrev_b32 v{vt}, 6, v{vt}"); p(f"v_lshrrev_b32 v{vt+1}, 2, v{vo8}"); p(f"v_add3_u32 v{vt}, v{vt}, v{vt+1}, s{sT0}")
        p(f"v_mul_u32_u24 v{vt}, 514, v{vt}"); p(f"s_and_b32 s{sT0}, s{sJ}, 3"); self.sc(sT0, (sT0, 7), add=2)
        p(f"v_add3_u32 v{vWa}, v{vt}, s{sT0}, v{vu16}")
        self.sc(sT0, (sR, 16), (sB, 15), (sCB, 7), (sA, 6))
        p(f"v_lshlrev_b32 v{vrow}, 10, v{vl31}"); p(f"v_add_u32 v{vrow}, s{sT0}, v{vrow}")
        vF = V.alloc(32, align=4); vkf = V.alloc(); vfb = V.alloc(); vsg = V.alloc(); val = V.alloc(); vbe = V.alloc()
        self.sc(sT0, (sCB, 6), (sA, 5))
        p(f"v_add_u32 v{vt}, s{sT0}, v{vl31}"); p(f"v_lshrrev_b32 v{vt+1}, 1, v{vt}"); p(f"v_mov_b32 v{vt+4}, 0x100")
        p(f"v_cmp_eq_u32 vcc, 0, v{vt}"); p(f"v_cndmask_b32 v{vt+1}, v{vt+1}, v{vt+4}, vcc")
        p(f"v_lshlrev_b32 v{vsg}, 31, v{vt+1}"); p(f"v_or_b32 v{vsg}, 1.0, v{vsg}")
        p(f"v_lshlrev_b32 v{vt+2}, 30, v{vt+1}"); p(f"v_and_b32 v{vt+2}, 0x80000000, v{vt+2}"); p(f"v_or_b32 v{vt+2}, 1.0, v{vt+2}")
        p(f"v_lshlrev_b32 v{vt+3}, 31, v{vt}"); p(f"v_xor_b32 v{vt+3}, v{vt+3}, v{vt+2}")
        p(f"v_cmp_lt_f32 vcc, 0, v{vsg}"); p(f"v_cndmask_b32 v{val}, 0, v{vt+2}, vcc"); p(f"v_cndmask_b32 v{vbe}, v{vt+3}, 0, vcc")
        p(f"v_cvt_f32_u32 v{vkf}, v{vt+1}"); p(f"v_mul_f32 v{vkf}, {f2h(1/512)}, v{vkf}")
        p(f"v_and_b32 v{vt}, 1, v{vt}"); p(f"v_cvt_f32_u32 v{vt}, v{vt}"); p(f"v_mul_f32 v{vt}, {f2h(0.25)}, v{vt}")
        p(f"v_cvt_f32_u32 v{vt+1}, v{vh}"); p(f"v_mul_f32 v{vt+1}, {f2h(8.0)}, v{vt+1}"); p(f"v_fma_f32 v{vfb}, v{vt+1}, v{vkf}, v{vt}")
        p(self.trig_pairs([vF + i for i in range(32)], vkf, vfb, [16 * (i // 4) + 2 * (i % 4) for i in range(32)], "cc", vt))
        V.free(vkf); V.free(vfb)
        accG = V.alloc(16); accC = V.alloc(16)
        wb = [V.alloc(16), V.alloc(16)]; sb = V.alloc(8); st = V.alloc(4)
        for i in range(4): p(f"v_mov_b32 v{st+i}, 0")
        self.stamp("fgen")
        p.wait(zst); V.free(vdum)
        p("s_mov_b64 exec, 1")
        p(f"buffer_atomic_add v{vOne}, v{vSig}, {sr(S_DBG,4)}, 0 offen sc1")
        p("s_mov_b64 exec, -1")
        DM += [grp("xt", vxt + e, S_X, "0", sV0, L_XT + e * 1024) for e in (0, 1)]
        DM += [grp("W", vWa, s, "0", sV0, L_WS + e * 1024) for e, s in enumerate((S_WR, S_WI))]
        DM += [grp("pp3", v3a, S_W3, f"s{sV1}", sV0, L_PP3 + e * 1024, mid=f"s_mov_b32 s{sV1}, {e*8*3584}") for e in (0, 1)]
        for kc in range(8): DM += wg("w2", kc, S_W2, L_XS)
        rd = {}
        stat_reads = lambda kc: [I(f"ds_read_b128 {vr(sb+4*u,4)}, v{vsb+u} offset:{kc*8192}") for u in (0, 1)]
        def stat_dots(toks):
            p.wait(*toks)
            for i in range(8):
                p(f"v_dot2c_f32_bf16 v{st+(i&1)}, v{vones}, v{sb+i}")
                p(f"v_dot2c_f32_bf16 v{st+2+(i&1)}, v{sb+i}, v{sb+i}")
        def frag_reads(kc):
            l = []; o = []
            for q in range(4):
                ks = 4 * kc + q
                o += [I(f"ds_read_b128 {ar(4*ks,4)}, v{vxb+q} offset:{kc*8192}"),
                      I(f"ds_read_b64_tr_b16 {vr(wb[kc&1]+4*q,2)}, v{vtrN} offset:{ks*2048}"),
                      I(f"ds_read_b64_tr_b16 {vr(wb[kc&1]+4*q+2,2)}, v{vtrN} offset:{ks*2048+512}")]
                l.append(o[-1])
            rd[kc] = l
            return o
        def mf1(kc):
            ms = []
            for q in range(4):
                ks = 4 * kc + q
                c = "0" if ks == 0 else None
                ms.append(Wait(rd[kc][q]))
                ms.append(I(f"{MF} {vr(accG,16)}, {vr(wb[kc&1]+4*q,4)}, {ar(4*ks,4)}, {c or vr(accG,16)}"))
                ms.append(I(f"{MF} {vr(accC,16)}, {vr(wb[kc&1]+4*q,4)}, {vr(vones,4)}, {c or vr(accC,16)}"))
            return ms
        vmean = V.alloc(2); vr1 = vmean + 1; vnm = V.alloc(2); gc = V.alloc(4)
        for kc in range(8):
            p.wait(tok["w1", kc])
            if kc == 7: p(WaitAll(vm=False, lgkm=True))
            p("s_barrier")
            self.stamp(f"bar{kc}")
            take = [DM.pop(0) for _ in range(4)]
            if kc == 0:
                t = stat_reads(0); p(t); p(sched(frag_reads(0), vm=take[:2], gap=24)); stat_dots(t)
                t = stat_reads(1); p(t); p(take[2]); p(take[3]); stat_dots(t)
            elif kc < 7:
                t = stat_reads(kc + 1); p(t)
                p(sched(mf1(kc - 1), vm=take, gap=64, fill=frag_reads(kc), even=True))
                stat_dots(t)
                if kc == 6:
                    p(f"v_add_f32 v{st}, v{st}, v{st+1}"); p(f"v_add_f32 v{st+1}, v{st+2}, v{st+3}")
                    self.sc(sT0, (sW, 9), add=L_STP)
                    p(f"v_lshl_add_u32 v{vt}, v{vl}, 3, s{sT0}")
                    p(f"ds_write_b64 v{vt}, {vr(st,2)}")
            else:
                self.sc(sT0, (sB, 8), add=L_STP)
                p(f"v_lshl_add_u32 v{vt}, v{vl31}, 3, s{sT0}")
                t = [p(f"ds_read_b64 {vr(sb+2*q,2)}, v{vt} offset:{q*512}") for q in range(4)]
                self.sc(sT0, (sR, 6), (sB, 5)); p(f"s_sub_u32 s{sT0}, s{sT0}, s{sSH}")
                fin = frag_reads(7) + [Wait(*t),
                       I(f"v_add_f32 v{sb}, v{sb}, v{sb+2}"), I(f"v_add_f32 v{sb+1}, v{sb+1}, v{sb+3}"),
                       I(f"v_add_f32 v{sb+4}, v{sb+4}, v{sb+6}"), I(f"v_add_f32 v{sb+5}, v{sb+5}, v{sb+7}"),
                       I(f"v_add_f32 v{sb}, v{sb}, v{sb+4}"), I(f"v_add_f32 v{sb+1}, v{sb+1}, v{sb+5}"),
                       I(f"v_mul_f32 v{vmean}, {f2h(1/512)}, v{sb}"), I(f"v_mul_f32 v{sb+1}, {f2h(1/512)}, v{sb+1}"),
                       I(f"v_fma_f32 v{sb+1}, -v{vmean}, v{vmean}, v{sb+1}"), I(f"v_max_f32 v{sb+1}, 0, v{sb+1}"),
                       I(f"v_add_f32 v{sb+2}, {f2h(EPS)}, v{sb+1}"), I(f"v_rsq_f32 v{vr1}, v{sb+2}"),
                       I(f"v_sub_f32 v{vnm}, 0, v{vmean}")]
                fin2 = [I(f"v_mul_f32 v{sb+1}, v{sb+1}, v{vr1}"), I(f"v_mul_f32 v{sb+1}, v{sb+1}, v{vr1}"),
                       I(f"v_add_f32 v{sb+2}, {f2h(EPS)}, v{sb+1}"), I(f"v_rsq_f32 v{sb+3}, v{sb+2}"),
                       I(f"v_add_u32 v{sb+4}, s{sT0}, v{vl31}"), I(f"v_mul_f32 v{sb+3}, v{vr1}, v{sb+3}"),
                       I(f"v_cmp_gt_u32 vcc, 0x800, v{sb+4}"), I(f"v_cndmask_b32 v{sb+3}, 0, v{sb+3}, vcc"),
                       I(f"v_rcp_f32 v{gc+2}, v{sb+3}"), I(f"v_mul_f32 v{gc}, {f2h(-K1)}, v{sb+3}"), I(f"v_mul_f32 v{sb+4}, v{sb+3}, v{sb+3}"),
                       I(f"v_mul_f32 v{sb+4}, {f2h(K2/K1)}, v{sb+4}"), I(f"v_mul_f32 v{gc+1}, v{gc}, v{sb+4}")]
                p(sched(mf1(6), vm=take, gap=64, fill=fin, even=True))
                p(sched(mf1(7), fill=fin2, even=True))
        vrdy = vpl
        rdy = self.poll_issue(vrdy, S_DBG, "0")
        self.stamp("gemm1")
        vo = wb[1]
        self.sc(sT1, (sR, 16), (sB, 15), (sCB, 12), (sA, 11))
        self.sc(sT0, (sR, 10), (sW, 8), add=WS_ST1)
        p(f"s_and_b32 s{sT2}, s{sCB}, 5"); p(f"s_cmp_eq_u32 s{sT2}, 0"); p(f"s_cselect_b32 s{sT0}, s{sT0}, {hex(OOB)}")
        p(f"v_subrev_u32 v{vt}, s{sSH}, v{vl}"); p(f"v_cmp_gt_u32 vcc, 32, v{vt}")
        p(f"v_lshl_add_u32 v{vt}, v{vt}, 3, s{sT0}"); p(f"v_mov_b32 v{vt+1}, {hex(OOB)}")
        p(f"v_cndmask_b32 v{vt}, v{vt+1}, v{vt}, vcc"); p(f"v_cmp_eq_u32 vcc, 0, v{vh}"); p(f"v_cndmask_b32 v{vt}, v{vt+1}, v{vt}, vcc")
        p(f"buffer_store_dwordx2 {vr(vmean,2)}, v{vt}, {sr(S_WS,4)}, 0 offen sc1")
        for i in range(8): p(f"v_pk_fma_f32 {vr(accG+2*i,2)}, {vr(accC+2*i,2)}, {vr(vnm,2)}, {vr(accG+2*i,2)} op_sel_hi:[1,0,1]")
        g = self.gelu_pk(accG, gc, vo, wb[0])
        h0 = len(g) // 2
        p(g[:h0]); p(f"buffer_store_dwordx4 {vr(vo,4)}, v{vL16}, {sr(S_WS,4)}, s{sT1} offen sc1")
        p(g[h0:]); gst = p(f"buffer_store_dwordx4 {vr(vo+4,4)}, v{vL16}, {sr(S_WS,4)}, s{sT1} offen offset:1024 sc1")
        self.stamp("gst")
        for r, n in ((accG, 16), (accC, 16), (gc, 4), (vnm, 2), (st, 4), (vxb, 4), (vsb, 2), (vtrN, 1), (sb, 8), (wb[1], 16), (vxa, 2), (vxt, 2), (v3a, 1), (vWa, 1)): V.free(r, n)
        vrs = V.alloc(16); accD = V.alloc(64)
        self.sc(sT0, (sW, 7), add=L_RST)
        p(f"v_lshl_add_u32 v{vt+4}, v{vl31}, 2, s{sT0}"); p(f"ds_write_b32 v{vt+4}, v{vr1}")
        p(f"v_lshl_add_u32 v{vt+5}, v{vh}, 4, s{sT0}")
        p.wait(tok["xt"]); p("s_barrier")
        rsl = [I(f"ds_read_b128 {vr(vrs+4*q,4)}, v{vt+5} offset:{32*q}") for q in range(4)]
        fl = list(rsl)
        for q in range(4):
            if q: fl.append(I(f"v_xor_b32 v{vt+6}, {16*q}, v{vxr}"))
            fl.append(I(f"ds_read_b64 {vr(vx+2*q,2)}, v{vt+6 if q else vxr}"))
        xrl = fl[-1]
        V.free(vmean, 2)
        def sig1a():
            self.poll_check(rdy, vrdy, S_DBG, "0", 6, 0)
            self.sc(sV2, (sR, 9), (sW, 7), add=WS_CNT + C_S1A * 128)
            self.signal(sV2, [gst])
            self.stamp("sig1a")
        ms = [I(f"{MF} {vr(accD+16*(ks>>3),16)}, {ar(4*ks,4)}, {vr(vF+4*(ks&7),4)}, {'0' if (ks&7) == 0 else vr(accD+16*(ks>>3),16)}") for ks in range(32)]
        p(sched(ms, vm=DM, gap=64, fill=fl, at=[(O("t_sig1a", 800), p.atom(sig1a))]))
        V.free(vF, 32); V.free(vwa); V.free(vxr)
        p.wait(*rsl)
        for r in range(16): p(f"v_fma_f32 v{accD+r}, v{accD+32+r}, v{vsg}, v{accD+r}")
        for r in range(16): p(f"v_fma_f32 v{accD+16+r}, v{accD+48+r}, v{vsg}, v{accD+16+r}")
        for r in range(16): p(f"v_fmac_f32 v{accD+r}, v{accD+16+r}, v{val}")
        for r in range(16): p(f"v_fmac_f32_dpp v{accD+r}, v{accD+16+r}, v{vbe} quad_perm:[1,0,3,2] row_mask:0xf bank_mask:0xf")
        for r in range(8): p(f"v_pk_mul_f32 {vr(accD+2*r,2)}, {vr(accD+2*r,2)}, {vr(vrs+2*r,2)}")
        for r in range(8): p(f"v_cvt_pk_bf16_f32 v{accD+16+r}, v{accD+2*r}, v{accD+2*r+1}")
        p(f"s_lshl_b32 s{sT0}, s{sA}, 5"); p(f"v_add_u32 v{vt}, s{sT0}, v{vl31}")
        p(f"s_lshl_b32 s{sT0}, s{sB}, 2"); p(f"v_xor_b32 v{vt+1}, s{sT0}, v{vl7}"); p(f"v_lshlrev_b32 v{vt+1}, 4, v{vt+1}")
        p(f"v_lshl_or_b32 v{vt}, v{vt}, 7, v{vt+1}"); p(f"v_lshl_or_b32 v{vt}, v{vh}, 3, v{vt}"); p(f"v_add_u32 v{vt}, {hex(L_T)}, v{vt}")
        for q in range(4):
            if q: p(f"v_xor_b32 v{vt+1}, {16*q}, v{vt}")
            p(f"ds_write_b64 v{vt+1 if q else vt}, {vr(accD+16+2*q,2)}")
        s1p = self.poll_issue(vpl, S_WS, f"s{sV2}")
        p.wait(tok["pp3"])
        wq = accD + 32; pk = accD + 48
        wl = [p(f"ds_read_b64_tr_b16 {vr(wq+4*arr+2*e,2)}, v{vtrW} offset:{arr*1024 + e*512}") for e in (0, 1) for arr in (0, 1)]
        for a in range(2):
            p(f"ds_read_b64_tr_b16 {vr(pk+4*a,2)}, v{vtrP+a}")
            p(f"ds_read_b64_tr_b16 {vr(pk+4*a+2,2)}, v{vtrP+a} offset:1024")
        p(f"s_mov_b32 s{sT0}, 0x05040100"); p(f"s_mov_b32 s{sT1}, 0x07060302")
        p(f"s_lshl_b32 s{sT2}, s{sW}, 1"); p(f"v_xor_b32 v{vt+1}, s{sT2}, v{vl7}"); p(f"v_lshlrev_b32 v{vt+1}, 4, v{vt+1}")
        p(f"v_lshl_or_b32 v{vt}, v{vl}, 7, v{vt+1}"); p(f"v_add_u32 v{vt}, {hex(L_T2)}, v{vt}"); p(f"v_xor_b32 v{vt+1}, 16, v{vt}")
        for e in (0, 1):
            p.wait(wl[2 * e + 1])
            for r in range(4): p(f"v_perm_b32 v{accD+4*e+r}, v{wq+4+2*e+(r>>1)}, v{wq+2*e+(r>>1)}, s{sT1 if r & 1 else sT0}")
            p(f"ds_write_b128 v{vt+e}, {vr(accD+4*e,4)}")
        V.free(vsg); V.free(val); V.free(vbe); V.free(vrs, 16); V.free(vtrW)
        p(f"s_add_u32 s{sT0}, s{sV0}, {hex(L_T)}")
        p(f"v_xor_b32 v{vt+3}, v{vo8}, v{vl7}"); p(f"v_lshlrev_b32 v{vt+3}, 4, v{vt+3}"); p(f"v_lshl_or_b32 v{vt+2}, v{vo8}, 7, v{vt+3}"); p(f"v_add_u32 v{vt+2}, s{sT0}, v{vt+2}")
        p(WaitAll(vm=False, lgkm=True)); p("s_barrier")
        tt = [p(f"ds_read_b128 {vr(accD+4*i,4)}, v{vt+2} offset:{(i>>1)*(L_T2-L_T) + (i&1)*1024}") for i in range(4)]
        p(f"s_lshl_b32 s{sT0}, s{sW}, 4"); p(f"v_add_u32 v{vt+1}, s{sT0}, v{vo8}"); p(f"v_lshlrev_b32 v{vt+3}, 4, v{vl7}")
        p(f"v_lshl_or_b32 v{vt+4}, v{vt+1}, 12, v{vt+3}")
        p(f"s_and_b32 s{sT0}, s{sJ}, 3"); self.sc(sT0, (sT0, 6), add=1)
        p(f"v_add_u32 v{vt+1}, s{sT0}, v{vt+1}"); p(f"v_add_u32 v{vt+6}, 8, v{vt+1}")
        for e in (0, 1):
            p(f"v_and_b32 v{vt+1+5*e}, 0xff, v{vt+1+5*e}"); p(f"v_lshl_or_b32 v{vt+5+e}, v{vt+1+5*e}, 13, v{vt+3}")
        self.sc(sT0, (sCB, 18), (sR, 7), add=WS_X1T); p(f"s_add_u32 s{sT1}, s{sT0}, 0x8000")
        p(f"s_lshr_b32 s{sT2}, s{sJ}, 3"); p(f"s_and_b32 s{sV3}, s{sJ}, 4"); self.sc(sT2, (sT2, 11), (sG, 8), (sV3, 5), add=WS_WT)
        self.sc(sV3, (sJ, 16), (sG, 12), (sW, 10), add=WS_W3P)
        p(f"s_cmp_lt_u32 s{sJ}, 28"); p(f"s_cselect_b32 s{sV3}, s{sV3}, {hex(OOB)}")
        p(f"v_add_u32 v{vt}, s{sV3}, v{vL16}"); p(f"v_add_u32 v{vt+1}, 0x8000, v{vt}")
        self.stamp("b1done")
        self.poll_check(s1p, vpl, S_WS, f"s{sV2}", 8, 1)
        self.stamp("poll1a")
        p.wait(tt[1])
        p(f"buffer_store_dwordx4 {vr(accD,4)}, v{vt+4}, {sr(S_WS,4)}, s{sT0} offen sc1")
        p(f"buffer_store_dwordx4 {vr(accD+4,4)}, v{vt+4}, {sr(S_WS,4)}, s{sT1} offen sc1")
        p.wait(tt[3])
        p(f"buffer_store_dwordx4 {vr(accD+8,4)}, v{vt+5}, {sr(S_WS,4)}, s{sT2} offen sc1")
        p(f"buffer_store_dwordx4 {vr(accD+12,4)}, v{vt+6}, {sr(S_WS,4)}, s{sT2} offen sc1")
        p(f"buffer_store_dwordx4 {vr(pk,4)}, v{vt}, {sr(S_WS,4)}, 0 offen sc1")
        xst = p(f"buffer_store_dwordx4 {vr(pk+4,4)}, v{vt+1}, {sr(S_WS,4)}, 0 offen sc1")
        if self.stop <= 1: return self.finish()
        vst = V.alloc(2)
        self.sc(sV3, (sB, 15), (sA, 11)); self.sc(sV2, (sR, 16), (sV3, 0))
        GM = []
        for c in range(8):
            GM += [grp(("g", c), vL16, S_WS, f"s{sV1}", sV3, L_W1S + c * 4096, e * 1024, True, mid=f"s_add_u32 s{sV1}, s{sV2}, {c*4096}") for e in (0, 1)]
        self.sc(sT0, (sR, 10), (sW, 8), add=WS_ST1); p(f"v_lshlrev_b32 v{vt+7}, 3, v{vl31}")
        stl = I(f"buffer_load_dwordx2 {vr(vst,2)}, v{vt+7}, {sr(S_WS,4)}, s{sT0} offen sc1")
        p(GM.pop(0)); p(GM.pop(0)); p(stl)
        V.free(accD, 64); V.free(wb[0], 16)
        fc = self.fft_consts()
        vgr = V.alloc(); gb = [V.alloc(16), V.alloc(16)]; w2b = [128, 144]; acc2 = V.alloc(16)
        self.sc(sT0, (sB, 15), add=L_W1S); p(f"v_add_u32 v{vgr}, s{sT0}, v{vL16}")
        GM += [grp("pp4", v4a, S_W4, f"s{sV1}", sV0, L_PP4 + e * 1024, mid=f"s_mov_b32 s{sV1}, {e*8192}") for e in (0, 1)]
        n0 = O("fc0", 150)
        p(sched(fc[:n0], vm=GM, gap=56, drain_vm=False)); fc = fc[n0:]
        rd = {}
        def reads2(c):
            o = []; rd[c] = []
            for q in range(4):
                ks = 4 * c + q
                o += [I(f"ds_read_b64_tr_b16 {ar(w2b[c&1]+4*q,2)}, v{vtrPa} offset:{L_XS+ks*2048}"),
                      I(f"ds_read_b64_tr_b16 {ar(w2b[c&1]+4*q+2,2)}, v{vtrPa} offset:{L_XS+ks*2048+1024}"),
                      I(f"ds_read_b128 {vr(gb[c&1]+4*q,4)}, v{vgr} offset:{ks*1024}")]
                rd[c].append(o[-1])
            return o
        def mf2(c):
            o = []
            for q in range(4):
                ks = 4 * c + q
                o += [Wait(rd[c][q]), I(f"{MF} {vr(acc2,16)}, {ar(w2b[c&1]+4*q,4)}, {vr(gb[c&1]+4*q,4)}, {'0' if ks == 0 else vr(acc2,16)}")]
            return o
        for c in range(8):
            while any(tok["g", c] in g for g in GM): p(GM.pop(0))
            p.wait(tok["g", c], tok["w2", 7]); p("s_barrier")
            if c == 0:
                p(reads2(0))
                self.sc(sT0, (sCB, 9), (sW, 7), add=WS_CNT + C_FLX * 128)
                p(f"s_and_b32 s{sT1}, s{sJ}, 3"); self.sc(sT1, (sT1, 9), (sW, 7), add=WS_CNT + C_FLW * 128)
                self.sc(sT2, (sJ, 7), add=WS_CNT + C_P3W * 128); p(f"s_cmp_lt_u32 s{sJ}, 28"); p(f"s_cselect_b32 s{sT2}, s{sT2}, {hex(OOB)}")
                self.signal(sT0, [xst]); self.signal(sT1, []); self.signal(sT2, [])
                self.stamp("sigx")
                p(f"s_mul_i32 s{sT0}, s{sJ}, 37"); p(f"s_lshr_b32 s{sT0}, s{sT0}, 8")
                p(f"s_lshr_b32 s{sQ}, s{sG}, 1"); p(f"s_lshl2_add_u32 s{sQ}, s{sQ}, s{sT0}")
                p(f"s_mul_i32 s{sT0}, s{sT0}, 7"); p(f"s_sub_u32 s{sNB}, s{sJ}, s{sT0}")
                p(f"s_and_b32 s{sT0}, s{sG}, 1"); p(f"s_mul_i32 s{sT0}, s{sT0}, 7"); p(f"s_add_u32 s{sNB}, s{sNB}, s{sT0}")
                self.sc(sV4, (sJ, 7), add=WS_CNT + C_FLX * 128)
                p(f"s_sub_u32 s{sT0}, s2, 1"); p(f"s_bfe_u32 s{sT0}, s{sT0}, 0x40004"); self.sc(sV5, (sT0, 7), add=WS_CNT + C_FLW * 128)
                self.sc(sV6, (sNB, 8), (sB, 7), add=WS_CNT + C_P3W * 128)
            else:
                p(sched(mf2(c - 1), vm=GM, gap=64, fill=reads2(c), even=True, drain_vm=False))
                k = O("fcs", 8); p(fc[:k]); fc = fc[k:]
            if c == O("c_poll", 7):
                pl = [self.poll_issue(vpl + i, S_WS, f"s{s}") for i, s in enumerate((sV4, sV5, sV6))]
        for g in GM: p(g)
        p(mf2(7))
        self.stamp("gemm2")
        V.free(v4a); V.free(vtrPa); V.free(vgr)
        self.poll_check(pl[0], vpl, S_WS, f"s{sV4}", 32, 2)
        self.poll_check(pl[1], vpl + 1, S_WS, f"s{sV5}", 64, 3)
        self.stamp("pollxw")
        self.sc(sT0, (2, 13), (sV0, 0)); p(f"s_add_u32 s{sT1}, s{sT0}, {hex(WS_X1T)}")
        self.dma(vL16, S_WS, f"s{sT1}", sV0, L_FC, 0, True); self.cd = self.dma(vL16, S_WS, f"s{sT1}", sV0, None, 1024, True)
        vw = self.vw = V.alloc(8, align=4)
        p(f"s_add_u32 s{sT1}, s{sT0}, {hex(WS_WT)}")
        p(f"buffer_load_dwordx4 {vr(vw,4)}, v{vL16}, {sr(S_WS,4)}, s{sT1} offen sc1")
        self.wl = p(f"buffer_load_dwordx4 {vr(vw+4,4)}, v{vL16}, {sr(S_WS,4)}, s{sT1} offen offset:1024 sc1")
        self.poll_check(pl[2], vpl + 2, S_WS, f"s{sV6}", 32, 4)
        self.sc(sV2, (sNB, 17), (sB, 16), (sA, 15), add=WS_W3P)
        W3 = []
        for ks in range(32):
            g = Atom()
            if ks & 3 == 0: g.append(I(f"s_add_u32 s{sV1}, s{sV2}, {(ks>>2)*4096}"))
            g.append(I(f"buffer_load_dwordx4 {ar(4*ks,4)}, v{vL16}, {sr(S_WS,4)}, s{sV1} offen" + (f" offset:{(ks&3)*1024}" if ks & 3 else "") + " sc1"))
            W3.append(g)
        self.w3l = W3[-1][-1]
        t16 = gb[0]
        def epi2():
            p.wait(stl, xrl)
            for i in range(8):
                p(f"v_lshlrev_b32 v{t16+2*i}, 16, v{vx+i}"); p(f"v_and_b32 v{t16+2*i+1}, 0xffff0000, v{vx+i}")
            for i in range(8): p(f"v_pk_add_f32 {vr(t16+2*i,2)}, {vr(t16+2*i,2)}, {vr(vst,2)} op_sel_hi:[1,0] neg_lo:[0,1] neg_hi:[0,1]")
            for i in range(8): p(f"v_pk_fma_f32 {vr(acc2+2*i,2)}, {vr(t16+2*i,2)}, {vr(vst,2)}, {vr(acc2+2*i,2)} op_sel:[0,1,0] op_sel_hi:[1,1,1]")
            for i in range(8): p(f"v_cvt_pk_bf16_f32 v{vx1+i}, v{acc2+2*i}, v{acc2+2*i+1}")
            self.sc(sT2, (sR, 16), (sB, 15), (sCB, 12), (sA, 11), add=WS_XF1)
        nw = O("w3pre", 2)
        p(sched(p.cap(epi2), vm=W3[:nw], gap=64)); W3 = W3[nw:]
        p(f"buffer_store_dwordx4 {vr(vx1,4)}, v{vL16}, {sr(S_WS,4)}, s{sT2} offen sc1")
        p(f"buffer_store_dwordx4 {vr(vx1+4,4)}, v{vL16}, {sr(S_WS,4)}, s{sT2} offen offset:1024 sc1")
        for i in range(4): p(f"v_pk_add_f32 {vr(t16+2*i,2)}, {vr(acc2+2*i,2)}, {vr(acc2+8+2*i,2)}")
        for i in range(4): p(f"v_pk_mul_f32 {vr(t16+8+2*i,2)}, {vr(acc2+2*i,2)}, {vr(acc2+2*i,2)}")
        for i in range(4): p(f"v_pk_fma_f32 {vr(t16+8+2*i,2)}, {vr(acc2+8+2*i,2)}, {vr(acc2+8+2*i,2)}, {vr(t16+8+2*i,2)}")
        for b0 in (t16, t16 + 8):
            p(f"v_pk_add_f32 {vr(b0,2)}, {vr(b0,2)}, {vr(b0+2,2)}"); p(f"v_pk_add_f32 {vr(b0+4,2)}, {vr(b0+4,2)}, {vr(b0+6,2)}")
        for b0 in (t16, t16 + 8): p(f"v_pk_add_f32 {vr(b0,2)}, {vr(b0,2)}, {vr(b0+4,2)}")
        for b0 in (t16, t16 + 8): p(f"v_add_f32 v{b0}, v{b0}, v{b0+1}")
        self.sc(sT0, (sR, 13), (sB, 12), (sA, 11), (sCB, 8), add=WS_ST2)
        p(f"v_lshlrev_b32 v{vt}, 3, v{vl31}"); p(f"v_lshl_or_b32 v{vt}, v{vh}, 2, v{vt}")
        p(f"v_permlane32_swap_b32 v{t16}, v{t16+8}"); p(f"v_add_f32 v{t16}, v{t16}, v{t16+8}")
        self.x1st = p(f"buffer_store_dword v{t16}, v{vt}, {sr(S_WS,4)}, s{sT0} offen sc1")
        self.stamp("x1st")
        pk = gb[1]
        p.wait(tok["pp4"])
        tl = []
        for a in range(2):
            p(f"ds_read_b64_tr_b16 {vr(pk+4*a,2)}, v{vtrP+a} offset:{L_PP4-L_PP3}")
            tl.append(p(f"ds_read_b64_tr_b16 {vr(pk+4*a+2,2)}, v{vtrP+a} offset:{L_PP4-L_PP3+1024}"))
        p(f"s_mul_i32 s{sT1}, s{sG}, 229376"); self.sc(sT0, (sJ, 13), (sW, 11), (sT1, 0), add=WS_W4P)
        p(f"s_cmp_lt_u32 s{sJ}, 28"); p(f"s_cselect_b32 s{sT0}, s{sT0}, {hex(OOB)}"); p(f"v_add_u32 v{vt+1}, s{sT0}, v{vL16}")
        p.wait(tl[0]); p(f"buffer_store_dwordx4 {vr(pk,4)}, v{vt+1}, {sr(S_WS,4)}, 0 offen sc1")
        p.wait(tl[1]); self.pst = p(f"buffer_store_dwordx4 {vr(pk+4,4)}, v{vt+1}, {sr(S_WS,4)}, 0 offen offset:1024 sc1")
        p(sched(fc, vm=W3, gap=64, drain_vm=False))
        V.free(self.fct, 16)
        for r, n in ((vst, 2), (acc2, 16), (gb[0], 16), (gb[1], 16), (vtrP, 2)): V.free(r, n)
        self.fft(W3)
        self.stamp("fft")
        if self.stop <= 3: return self.finish()
        self.phase3()
        if self.stop <= 4: return self.finish()
        self.phase4()
        return self.finish()

    def fft_consts(self):
        p = self.p; V = self.V; vl = self.vl
        self.fct = V.alloc(16); vt = self.fct + 8; sT0, sT1 = 44, 45
        self.C64 = V.alloc(24); self.C3 = V.alloc(24); self.C4 = V.alloc(24)
        self.tw1 = V.alloc(16); self.tw2 = V.alloc(16)
        f = self.fct; o = []
        A = lambda s: o.append(I(s))
        vG4, vL, vl15, vb0, vb1, vf0, vf1, vsc = f, f + 1, f + 2, f + 3, f + 4, f + 5, f + 6, f + 7
        A(f"v_and_b32 v{vt}, 15, v{vl}"); A(f"v_cvt_f32_u32 v{vl15}, v{vt}")
        A(f"s_lshl_b32 s{sT0}, s{sW}, 4"); A(f"v_add_u32 v{vt}, s{sT0}, v{vt}"); A(f"v_cvt_f32_u32 v{vL}, v{vt}")
        A(f"v_lshrrev_b32 v{vt}, 4, v{vl}"); A(f"v_lshlrev_b32 v{vt}, 2, v{vt}"); A(f"v_cvt_f32_u32 v{vG4}, v{vt}")
        A(f"s_lshr_b32 s{sT0}, s2, 7"); A(f"s_add_u32 s{sT0}, s{sT0}, 1"); A(f"s_sub_u32 s{sT1}, 0, s{sT0}")
        A(f"s_bitcmp1_b32 s2, 6"); A(f"s_cselect_b32 s{sT0}, s{sT1}, s{sT0}")
        A(f"v_cvt_f32_i32 v{vsc}, s{sT0}"); A(f"v_sub_f32 v{vsc}, v{vG4}, v{vsc}")
        def cs_set(dst, vf, vb, consts):
            for i, c in enumerate(consts):
                ff = vf[i] if isinstance(vf, list) else vf; bb = vb[i] if isinstance(vb, list) else vb
                A(f"v_fmamk_f32 v{vt}, v{ff}, {f2h(c)}, v{bb}"); A(f"v_add_f32 v{vt+1}, v{vt}, v{ff}")
                A(f"v_cos_f32 v{vt+2}, v{vt}"); A(f"v_cos_f32 v{vt+3}, v{vt+1}"); A(f"v_sin_f32 v{vt+4}, v{vt}"); A(f"v_sin_f32 v{vt+5}, v{vt+1}")
                A(f"v_cvt_pk_bf16_f32 v{dst+i}, v{vt+2}, v{vt+3}"); A(f"v_cvt_pk_bf16_f32 v{dst+8+i}, v{vt+4}, v{vt+5}")
                A(f"v_cvt_pk_bf16_f32 v{dst+16+i}, -v{vt+4}, -v{vt+5}")
        A(f"v_mul_f32 v{vf0}, {f2h(1/64)}, v{vL}"); A(f"v_mul_f32 v{vb0}, v{vf0}, v{vG4}")
        cs_set(self.C64, vf0, vb0, [32 * (i >> 2) + 16 * ((i >> 1) & 1) + 2 * (i & 1) for i in range(8)])
        c32 = [16 * ((i >> 1) & 1) + 2 * (i & 1) for i in range(8)]
        A(f"v_mul_f32 v{vf0}, {f2h(1/32)}, v{vl15}"); A(f"v_add_f32 v{vf1}, 0.5, v{vf0}")
        A(f"v_mul_f32 v{vb0}, v{vf0}, v{vsc}"); A(f"v_mul_f32 v{vb1}, v{vf1}, v{vsc}")
        cs_set(self.C3, [vf0] * 4 + [vf1] * 4, [vb0] * 4 + [vb1] * 4, c32)
        A(f"v_mul_f32 v{vb0}, v{vf0}, v{vG4}"); A(f"v_mul_f32 v{vb1}, v{vf1}, v{vG4}")
        cs_set(self.C4, [vf0] * 4 + [vf1] * 4, [vb0] * 4 + [vb1] * 4, c32)
        A(f"v_mul_f32 v{vf0}, {f2h(1/2048)}, v{vL}"); A(f"v_mul_f32 v{vb0}, v{vf0}, v{vsc}")
        for i in range(8):
            A(f"v_fmamk_f32 v{vt+(i&1)}, v{vf0}, {f2h(16*(i>>2) + (i&3))}, v{vb0}")
            A(f"v_cos_f32 v{self.tw1+i}, v{vt+(i&1)}"); A(f"v_sin_f32 v{self.tw1+8+i}, v{vt+(i&1)}")
        A(f"v_mul_f32 v{vf0}, {f2h(1/2048)}, v{vl15}"); A(f"v_add_f32 v{vf1}, {f2h(16/2048)}, v{vf0}")
        A(f"v_sub_f32 v{vL}, v{vL}, v{vl15}"); A(f"v_add_f32 v{vL}, v{vL}, v{vG4}")
        A(f"v_mul_f32 v{vb0}, v{vf0}, v{vL}"); A(f"v_mul_f32 v{vb1}, v{vf1}, v{vL}")
        A(f"s_mov_b32 s{sT0}, {f2h(2.0**-19)}"); A(f"s_cmp_eq_u32 s2, 0"); A(f"s_cselect_b32 s{sT0}, {f2h(2.0**-20)}, s{sT0}")
        for i in range(8):
            A(f"v_fmamk_f32 v{vt}, v{vf1 if i >> 2 else vf0}, {f2h(i&3)}, v{vb1 if i >> 2 else vb0}")
            A(f"v_cos_f32 v{vt+2}, v{vt}"); A(f"v_sin_f32 v{vt+3}, v{vt}")
            A(f"v_mul_f32 v{self.tw2+i}, s{sT0}, v{vt+2}"); A(f"v_mul_f32 v{self.tw2+8+i}, s{sT0}, v{vt+3}")
        return atomize(o)

    def fft(self, W3):
        p = self.p; V = self.V; vt = self.vt; vl = self.vl; vL16 = self.vL16; O = self.opt.get; vw = self.vw
        xa = V.alloc(32); acc = V.alloc(16); pk = V.alloc(8, align=4); tm = V.alloc(16)
        M = "v_mfma_f32_16x16x32_bf16"
        X = lambda part, mt, kst: xa + 16 * part + 8 * mt + 4 * kst
        tk = {}
        def cplx(dst, data, cst, nk, conj, data_first, toks=None):
            chains = []
            for t in range(2):
                for part in (0, 1):
                    terms = []
                    for k in range(nk):
                        terms.append((data(part, t, k), cst(0, t, k), (part, t, k)))
                        kind = (1 if part == 0 else 2) if not conj else (2 if part == 0 else 1)
                        terms.append((data(1 - part, t, k), cst(kind, t, k), (1 - part, t, k)))
                    chains.append((dst + 8 * part + 4 * t, terms))
            for d, terms in chains:
                for n, (a, c, key) in enumerate(terms):
                    if toks: p.wait(toks[key])
                    x, y = (a, c) if data_first else (c, a)
                    p(f"{M} {vr(d,4)}, {vr(x,4)}, {vr(y,4)}, {'0' if n == 0 else vr(d,4)}")
        def cmul_pack(cs, conj):
            ng = "neg_lo:[1,0,0] neg_hi:[1,0,0]"
            for t in range(2):
                R = (2 * t, 2 * t + 1)
                for i in R: p(f"v_pk_mul_f32 {vr(tm+2*i,2)}, {vr(acc+2*i,2)}, {vr(cs+2*i,2)}")
                for i in R: p(f"v_pk_mul_f32 {vr(tm+8+2*i,2)}, {vr(acc+8+2*i,2)}, {vr(cs+2*i,2)}")
                for i in R: p(f"v_pk_fma_f32 {vr(tm+2*i,2)}, {vr(acc+8+2*i,2)}, {vr(cs+8+2*i,2)}, {vr(tm+2*i,2)} {ng if conj else ''}")
                for i in R: p(f"v_pk_fma_f32 {vr(tm+8+2*i,2)}, {vr(acc+2*i,2)}, {vr(cs+8+2*i,2)}, {vr(tm+8+2*i,2)} {'' if conj else ng}")
            for i in range(8): p(f"v_cvt_pk_bf16_f32 v{pk+i}, v{tm+2*i}, v{tm+2*i+1}")
        def body():
            p(f"v_bfe_u32 v{vt}, v{vl}, 2, 4"); p(f"v_lshlrev_b32 v{vt}, 6, v{vt}"); p(f"v_and_b32 v{vt+1}, 3, v{vl}"); p(f"v_lshl_or_b32 v{vt}, v{vt+1}, 3, v{vt}")
            p(f"v_add_u32 v{vt}, {hex(L_FC)}, v{vt}")
            p.wait(self.cd); p("s_barrier")
            for mt in range(2):
                for kst in range(2):
                    for part in range(2):
                        for hf in range(2):
                            tk[part, mt, kst] = p(f"ds_read_b64_tr_b16 {vr(X(part,mt,kst)+2*hf,2)}, v{vt} offset:{part*4096 + kst*2048 + hf*1024 + mt*32}")
            self.sc(sT0, (sB, 10), (sA, 3), add=L_E)
            p(f"v_add_u32 v{vt+2}, s{sT0}, v{vL16}"); p(f"v_add_u32 v{vt+1}, {hex(L_E)}, v{vL16}")
            cplx(acc, X, lambda kind, t, k: self.C64 + 8 * kind + 4 * k, 2, False, True, tk)
            p.wait(self.wl)
            wf = xa
            for i in range(8):
                p(f"v_lshlrev_b32 v{wf+i}, 16, v{vw+i}"); p(f"v_and_b32 v{wf+8+i}, 0xffff0000, v{vw+i}")
            cmul_pack(self.tw1, False)
            cplx(acc, lambda part, t, k: pk + 4 * part, lambda kind, t, k: self.C3 + 8 * kind + 4 * t, 1, False, False)
            cmul_pack(wf, True)
            cplx(acc, lambda part, t, k: pk + 4 * part, lambda kind, t, k: self.C4 + 8 * kind + 4 * t, 1, True, True)
            cmul_pack(self.tw2, True)
            for part in range(2):
                for nt in range(2):
                    p(f"ds_write_b64 v{vt+2}, {vr(pk+4*part+2*nt,2)} offset:{nt*4096 + part*2048}")
            p(WaitAll(vm=False, lgkm=True)); p("s_barrier")
            for mt in range(2):
                for kst in range(2):
                    for part in range(2):
                        tk[part, mt, kst] = p(f"ds_read_b128 {vr(X(part,mt,kst),4)}, v{vt+1} offset:{mt*4096 + part*2048 + kst*1024}")
            p(f"v_and_b32 v{vt}, 15, v{vl}"); p(f"v_lshlrev_b32 v{vt}, 6, v{vt}"); p(f"v_bfe_u32 v{vt+3}, v{vl}, 4, 1"); p(f"v_lshl_or_b32 v{vt}, v{vt+3}, 5, v{vt}")
            p(f"v_lshl_or_b32 v{vt}, v{self.vh}, 4, v{vt}")
            self.sc(sT0, (2, 13), (sW, 10), add=WS_Y1T); p(f"s_add_u32 s{sT1}, s{sT0}, 4096")
            cplx(acc, X, lambda kind, t, k: self.C64 + 8 * kind + 4 * k, 2, True, True, tk)
            for i in range(8): p(f"v_cvt_pk_bf16_f32 v{pk+i}, v{acc+2*i}, v{acc+2*i+1}")
            for part in range(2):
                p(f"v_permlane16_swap_b32 v{pk+4*part}, v{pk+4*part+2}"); p(f"v_permlane16_swap_b32 v{pk+4*part+1}, v{pk+4*part+3}")
        p(f"s_lshr_b32 s{sV4}, s{sR}, 1"); self.sc(sV4, (sV4, 9), (sW, 7), add=WS_CNT + C_S2A * 128)
        p(f"s_mul_i32 s{sV5}, s{sJ}, 37"); p(f"s_lshr_b32 s{sV5}, s{sV5}, 8"); self.sc(sV5, (sV5, 7), (sG, 9), add=WS_CNT + C_P4W * 128)
        p(f"s_cmp_lt_u32 s{sJ}, 28"); p(f"s_cselect_b32 s{sV5}, s{sV5}, {hex(OOB)}")
        p(f"s_and_b32 s{sV6}, s{sQ}, 15"); self.sc(sV6, (sV6, 9), (sW, 7), add=WS_CNT + C_S2A * 128)
        def sig():
            self.signal(sV4, [self.x1st]); self.stamp("sig2a"); self.signal(sV5, [self.pst])
        def pl(): self.s2p = self.poll_issue(self.vpl, S_WS, f"s{sV6}")
        p(sched(p.cap(body), vm=W3, gap=O("gap_w3", 56), at=[(O("t_sig2a", 300), p.atom(sig)), (O("t_poll2a", 1200), p.atom(pl))]))
        p(f"buffer_store_dwordx4 {vr(pk,4)}, v{vt}, {sr(S_WS,4)}, s{sT0} offen sc1")
        self.yst = p(f"buffer_store_dwordx4 {vr(pk+4,4)}, v{vt}, {sr(S_WS,4)}, s{sT1} offen sc1")
        p(f"s_lshr_b32 s{sV7}, s2, 6"); self.sc(sV7, (sV7, 7), (sW, 9), add=WS_CNT + C_FLY * 128)
        for r, n in ((xa, 32), (acc, 16), (pk, 8), (tm, 16), (vw, 8), (self.C64, 24), (self.C3, 24), (self.C4, 24), (self.tw1, 16), (self.tw2, 16)): V.free(r, n)

    def w4_groups(self, lo, hi):
        o = []
        for n in range(lo, hi):
            i, ot = n >> 1, n & 1
            reg = 128 + 4 * n if n < 32 else 4 * (n - 32)
            g = Atom()
            if n & 3 == 0: g.append(I(f"s_add_u32 s{sV2}, s{sV3}, {i*2048}"))
            g.append(I(f"buffer_load_dwordx4 {ar(reg,4)}, v{self.vw4+ot}, {sr(S_WS,4)}, s{sV2} offen" + (" offset:2048" if i & 1 else "") + " sc1"))
            o.append(g)
        return o

    def finv_gen(self, tg):
        o = []
        for ks in range(8):
            for ot in range(2):
                g = self.trig_pairs([self.fi + 8 * ks + 4 * ot + jj for jj in range(4)], self.vdf + ot, self.vdf + 2 + ot, [8 * ks + jj for jj in range(4)], "cs", tg)
                if ks == 0:
                    i = next(i for i, x in enumerate(g) if x.op == "v_cos_f32")
                    g[i] = I(f"v_cos_f32 v{tg+2}, v{self.vdf+4+ot}")
                o += g
        return o

    def y_groups(self, tk):
        p = self.p; o = []
        for m in range(16):
            def f(): tk.append(self.dma(self.vya, S_WS, f"s{sV1}", sV5, L_XS + m * 1024, 0, True, mid=f"s_add_u32 s{sV1}, s{sV4}, {m*0x8000}"))
            o.append(p.atom(f))
        return o

    def phase3(self):
        p = self.p; V = self.V; vt = self.vt; vl = self.vl; vL16 = self.vL16; vl31 = self.vl31; vh = self.vh; O = self.opt.get
        MF = "v_mfma_f32_32x32x16_bf16"; vpl = self.vpl
        self.fi = V.alloc(64, at=192); self.vdf = V.alloc(6, align=2); self.vya = V.alloc(); tg = V.alloc(8, align=4)
        vdf = self.vdf
        def common():
            p(f"s_lshl_b32 s{sT0}, s{sA}, 10"); p(f"v_add_u32 v{self.vw4}, s{sT0}, v{vL16}"); p(f"v_xor_b32 v{self.vw4+1}, 0x400, v{self.vw4}")
            self.sc(sT0, (sCB, 6), (sA, 5))
            p(f"v_add_u32 v{tg+1}, s{sT0}, v{vl31}"); p(f"v_xor_b32 v{tg+2}, 32, v{tg+1}")
            p(f"s_lshl_b32 s{sT0}, s{sW}, 6"); p(f"v_lshl_add_u32 v{tg+3}, v{vh}, 2, s{sT0}"); p(f"v_cmp_eq_u32 vcc, 0, v{tg+3}"); p(f"v_cvt_f32_u32 v{tg+3}, v{tg+3}")
            for o in range(2):
                p(f"v_cvt_f32_u32 v{vdf+o}, v{tg+1+o}"); p(f"v_mul_f32 v{tg+4}, 0.5, v{vdf+o}"); p(f"v_mul_f32 v{vdf+o}, {f2h(1/512)}, v{vdf+o}")
                p(f"v_mul_f32 v{vdf+2+o}, v{vdf+o}, v{tg+3}"); p(f"v_cndmask_b32 v{vdf+4+o}, v{vdf+2+o}, v{tg+4}, vcc")
            p(f"v_lshl_or_b32 v{self.vya}, v{self.vo8}, 12, v{self.vu16}")
        def bases():
            p(f"s_mul_i32 s{sV3}, s{sCB}, 229376"); p(f"s_mul_i32 s{sT0}, s{sW}, {28*2048}"); p(f"s_add_u32 s{sV3}, s{sV3}, s{sT0}"); p(f"s_add_u32 s{sV3}, s{sV3}, {hex(WS_W4P)}")
            self.sc(sV4, (sW, 19), (sR, 7), add=WS_Y1T); p(f"s_lshl_b32 s{sV5}, s{sW}, 14")
            self.sc(sV6, (sCB, 9), (sW, 7), add=WS_CNT + C_P4W * 128)
            p(f"s_lshr_b32 s46, s{sR}, 3"); self.sc(46, (46, 9), (sW, 7), add=WS_CNT + C_FLY * 128)
        Lskip = self.lab("nop3")
        p(f"s_cmp_ge_u32 s{sJ}, 28"); p(f"s_cbranch_scc1 {Lskip}")
        p.skip_begin()
        self.poll_check(self.s2p, vpl, S_WS, f"s{sV6}", 16, 6)
        self.stamp("poll2a")
        s2 = V.alloc(16)
        self.sc(sT0, (sQ, 14), (sB, 12), (sA, 11), add=WS_ST2); p(f"s_add_u32 s{sT1}, s{sT0}, 8192")
        self.sc(s3 := 3, (sB, 15), (sA, 11)); self.sc(45, (sQ, 17), (3, 0), add=WS_XF1)
        xd = []; XM = []
        for ph in range(2):
            for c in range(8):
                for e in (0, 1):
                    def f(): xd.append(self.dma(vL16, S_WS, f"s{sV1}", 3, ph * 65536 + c * 4096, e * 1024, True, mid=f"s_add_u32 s{sV1}, s45, {ph*65536 + c*4096}"))
                    XM.append(p.atom(f))
        xd = xd[1::2]
        p(XM.pop(0)); p(XM.pop(0))
        for i in range(4):
            s2l = p(f"buffer_load_dwordx4 {vr(s2+4*i,4)}, v{vL16}, {sr(S_WS,4)}, s{sT1 if i >> 1 else sT0} offen" + (" offset:1024" if i & 1 else "") + " sc1")
        common(); bases()
        FG = self.finv_gen(tg)
        cs = V.alloc(16)
        ms = [Wait(self.w3l)] + [I(f"{MF} {vr(cs,16)}, {vr(self.vones,4)}, {ar(4*ks,4)}, {'0' if ks == 0 else vr(cs,16)}") for ks in range(32)]
        nx = O("nx0", 8)
        first = XM[:nx]; XM = XM[nx:]
        p(sched(ms, vm=first, gap=56, fill=FG, drain=False, drain_vm=True,
                at=[(O("t_fly", 700), p.atom(lambda: self.signal(sV7, [self.yst])))]))
        self.stamp("colsum")
        p.wait(s2l)
        for i in range(2):
            p(f"v_pk_add_f32 {vr(s2+2*i,2)}, {vr(s2+2*i,2)}, {vr(s2+4+2*i,2)}"); p(f"v_pk_add_f32 {vr(s2+8+2*i,2)}, {vr(s2+8+2*i,2)}, {vr(s2+12+2*i,2)}")
        p(f"v_and_b32 v{vt}, 15, v{vl}"); p(f"v_lshlrev_b32 v{vt}, 4, v{vt}"); p(f"v_bfe_u32 v{vt+1}, v{vl}, 4, 1")
        for i in range(4): p(f"v_permlane16_swap_b32 v{s2+i}, v{s2+8+i}")
        for i in range(4): p(f"v_add_f32 v{s2+i}, v{s2+i}, v{s2+8+i}")
        for i in range(4): p(f"v_mov_b32 v{s2+8+i}, v{s2+i}")
        self.sc(sT0, (sA, 10), (sB, 8), add=L_ST3)
        p(f"v_lshl_or_b32 v{vt}, v{vt+1}, 9, v{vt}"); p(f"v_add_u32 v{vt}, s{sT0}, v{vt}")
        for i in range(4): p(f"v_permlane32_swap_b32 v{s2+i}, v{s2+8+i}")
        for i in range(4): p(f"v_add_f32 v{s2+i}, v{s2+i}, v{s2+8+i}")
        stw = p(f"ds_write_b128 v{vt}, {vr(s2,4)}")
        p(f"v_lshlrev_b32 v{vt}, 3, v{vl31}"); p(f"v_add_u32 v{vt}, {hex(L_ST3)}, v{vt}")
        vrd = V.alloc(2)
        p(f"v_add_u32 v{vrd+1}, 0x10000, v{vL16}"); p(f"v_mov_b32 v{vrd}, v{vL16}")
        ca = V.alloc(4)
        p(f"v_cvt_pk_bf16_f32 v{vt+1}, v{cs}, v{cs}"); p(f"v_and_b32 v{vt+2}, 0xffff0000, v{vt+1}"); p(f"v_sub_f32 v{vt+2}, v{cs}, v{vt+2}")
        p(f"v_cvt_pk_bf16_f32 v{vt+2}, v{cs}, v{vt+2}"); p(f"v_and_b32 v{vt+1}, 0xffff, v{vt+1}"); p(f"v_cmp_eq_u32 vcc, 0, v{vh}")
        p(f"v_mov_b32 v{ca+2}, 0"); p(f"v_mov_b32 v{ca+3}, 0"); p(f"v_cndmask_b32 v{ca}, 0, v{vt+2}, vcc"); p(f"v_cndmask_b32 v{ca+1}, 0, v{vt+1}, vcc")
        V.free(cs, 16)
        gc = V.alloc(16); mb = V.alloc(10, align=2)
        NB = 6
        fb = V.alloc(4 * NB); acc = [V.alloc(16), V.alloc(16)]; et = V.alloc(8, align=4); eo = V.alloc(8, align=4)
        p(f"s_mul_i32 s44, s{sQ}, {4*114688}"); self.sc(sT0, (sNB, 13), (sW, 11), add=WS_H2F); p(f"s_add_u32 s44, s44, s{sT0}")
        rds = {}
        def rd(n):
            tb, ks = n >> 5, n & 31
            rds[n] = I(f"ds_read_b128 {vr(fb+4*(n%NB),4)}, v{vrd+(tb>>1)} offset:{(tb&1)*32768 + ks*1024}")
            return rds[n]
        def epi(tb, plain):
            g = self.gelu_plain(acc[tb & 1], gc + 4 * tb, eo, et) if plain else self.gelu_pk(acc[tb & 1], gc + 4 * tb, eo, fb)
            h0 = len(g) // 2
            s0 = I(f"buffer_store_dwordx4 {vr(eo,4)}, v{vL16}, {sr(S_WS,4)}, s44 offen sc1")
            self.hst = I(f"buffer_store_dwordx4 {vr(eo+4,4)}, v{vL16}, {sr(S_WS,4)}, s44 offen offset:1024 sc1")
            return g[:h0] + [s0] + g[h0:] + [self.hst, I(f"s_add_u32 s44, s44, 114688")]
        sl = [I(f"ds_read_b64 {vr(s2+2*i,2)}, v{vt} offset:{(i&1)*1024 + (i>>1)*256}") for i in range(8)]
        fin = sl + [I(f"v_mov_b32 v{mb+8}, 0"), I(f"v_mov_b32 v{mb+9}, 0"), Wait(*sl)]
        for tb in range(4):
            b0 = s2 + 4 * tb; c0 = gc + 4 * tb
            fin += [I(f"v_add_f32 v{b0}, v{b0}, v{b0+2}"), I(f"v_add_f32 v{b0+1}, v{b0+1}, v{b0+3}"),
                    I(f"v_mul_f32 v{b0}, {f2h(-1/512)}, v{b0}"), I(f"v_mul_f32 v{b0+1}, {f2h(1/512)}, v{b0+1}"),
                    I(f"v_fma_f32 v{b0+1}, -v{b0}, v{b0}, v{b0+1}"), I(f"v_cvt_pk_bf16_f32 v{mb+2*tb}, v{b0}, v{b0}"),
                    I(f"v_max_f32 v{b0+1}, 0, v{b0+1}"), I(f"v_and_b32 v{b0+2}, 0xffff0000, v{mb+2*tb}"),
                    I(f"v_add_f32 v{b0+1}, {f2h(EPS)}, v{b0+1}"), I(f"v_sub_f32 v{b0+2}, v{b0}, v{b0+2}"),
                    I(f"v_rsq_f32 v{b0+3}, v{b0+1}"), I(f"v_cvt_pk_bf16_f32 v{mb+2*tb+1}, v{b0+2}, v{b0+2}"),
                    I(f"v_mul_f32 v{c0+2}, v{b0+1}, v{b0+3}"), I(f"v_mul_f32 v{c0}, {f2h(-K1)}, v{b0+3}"),
                    I(f"v_mul_f32 v{b0+3}, v{b0+3}, v{b0+3}"), I(f"v_mul_f32 v{b0+3}, {f2h(K2/K1)}, v{b0+3}"), I(f"v_mul_f32 v{c0+1}, v{c0}, v{b0+3}")]
        AH = NB - 1
        W4 = self.w4_groups(0, 32); yd = []
        pt = {}
        def pi(k, s): pt[k] = self.poll_issue(vpl + k, S_WS, f"s{s}")
        VM = XM + []
        VM.insert(4, p.atom(lambda: pi(1, sV6)))
        VM.append(p.atom(lambda: self.poll_check(pt[1], vpl + 1, S_WS, f"s{sV6}", 28, 5)))
        VM += W4[:20]; VM.append(p.atom(lambda: pi(2, 46))); VM += W4[20:]
        VM.append(p.atom(lambda: self.poll_check(pt[2], vpl + 2, S_WS, "s46", 64, 7)))
        YG = self.y_groups(yd)
        for tb in range(4):
            def ensure(t):
                o = []
                while any(t in g for g in VM): o.append(VM.pop(0))
                return o
            segs = []; main = []
            for ks in range(32):
                n = 32 * tb + ks
                if (tb == 0 and ks % 8 == 0) or (tb == 2 and ks == 0):
                    if main: segs.append((None, main))
                    t = xd[ks // 4 + 1] if tb == 0 else xd[15]
                    main = [Wait(t)] + ([Wait(stw)] if n == 0 else []) + [I("s_barrier")]
                    segs.append((t, []));
                    for m in range(n, n + AH):
                        if m not in rds: main.append(rd(m))
                m = n + AH
                lim = (ks // 8 + 1) * 8 if tb == 0 and ks < 24 else (64 if tb < 2 else 128)
                if ks % 2 == 0: main.append(Wait(rds[n], rds.get(n + 1)))
                main.append(I(f"{MF} {vr(acc[tb&1],16)}, {ar(4*ks,4)}, {vr(fb+4*(n%NB),4)}, {'0' if ks == 0 else vr(acc[tb&1],16)}"))
                if m < lim and m not in rds: main.append(rd(m))
            main.append(I(f"{MF} {vr(acc[tb&1],16)}, {vr(ca,4)}, {vr(mb+2*tb,4)}, {vr(acc[tb&1],16)}"))
            segs.append((None, main))
            fill = (fin + FG) if tb == 0 else epi(tb - 1, True)
            if tb == 0:
                k = 0
                for t, mn in segs:
                    if t is not None: p(ensure(t)); continue
                    k += 1
                    p(sched(mn[:-1] if k == 4 else mn, vm=VM, gap=O("gap0", 60), fill=fill, drain=False))
                    if k == 4:
                        while fin[-1] in fill: p(fill.pop(0))
                        p(mn[-1]); print("finv leftover after pass 0:", len(fill)); p(sched(fill, vm=VM, gap=60, drain_vm=False))
            else:
                for t, mn in segs:
                    if t is not None: p(ensure(t)); continue
                    if tb == 2:
                        p(mn[:2]); mn = mn[2:]; VM += YG
                    p(sched(mn, vm=VM, gap=O("gap3", 64), fill=fill, even=True, fill_start=1, drain_vm=False))
            self.stamp(f"p3_{tb}")
        p(sched(epi(3, False), vm=VM, gap=64))
        self.yd = yd
        self.sc(sT0, (sNB, 2), (sW, 0)); p(f"s_mul_i32 s{sT0}, s{sT0}, 37"); p(f"s_lshr_b32 s{sT0}, s{sT0}, 9")
        self.sc(sV7, (sT0, 7), (sQ, 9), add=WS_CNT + C_S3 * 128)
        p("s_branch L_p3done")
        p.skip_end(); p.label(Lskip)
        p.skip_begin()
        self.signal(sV7, [self.yst])
        common(); bases()
        self.poll_vec(sV6, 28, 5)
        p(sched(self.finv_gen(tg), vm=self.w4_groups(0, 32), gap=64))
        self.poll_vec(46, 64, 7)
        p("s_barrier")
        yd2 = []
        for g in self.y_groups(yd2): p(g)
        p(WaitAll(vm=True, lgkm=False))
        p(f"s_mov_b32 s{sV7}, {hex(OOB)}")
        p.skip_end()
        p.label("L_p3done")
        self.stamp("h2st")
        for r, n in ((s2, 16), (vrd, 2), (ca, 4), (gc, 16), (mb, 10), (fb, 4 * NB), (acc[0], 16), (acc[1], 16), (et, 8), (eo, 8), (tg, 8), (self.vdf, 6), (self.vya, 1)): V.free(r, n)

    def phase4(self):
        p = self.p; V = self.V; vt = self.vt; vl = self.vl; vL16 = self.vL16; vl31 = self.vl31; vh = self.vh; O = self.opt.get
        MF = "v_mfma_f32_32x32x16_bf16"; vpl = self.vpl; fi = self.fi
        acc = V.alloc(64, at=128)
        vs = V.alloc(16); pre = V.alloc(16); vty = V.alloc(2); yb = V.alloc(24)
        p(f"s_lshl_b32 s{sT0}, s{sB}, 6"); p(f"v_lshl_or_b32 v{vt+1}, v{vh}, 10, v{self.vtr0}"); p(f"v_add_u32 v{vt+1}, s{sV5}, v{vt+1}")
        p(f"v_xor_b32 v{vty+1}, s{sT0}, v{vt+1}"); p(f"v_xor_b32 v{vty}, 64, v{vty+1}")
        tk = {}
        def yrd(ks):
            o = [Wait(self.yd[2 * ks + 1])]
            for ps in range(2):
                b = yb + 8 * (ks % 3) + 4 * ps
                o.append(I(f"ds_read_b64_tr_b16 {vr(b,2)}, v{vty+ps} offset:{L_XS+ks*2048}"))
                tk[ks, ps] = I(f"ds_read_b64_tr_b16 {vr(b+2,2)}, v{vty+ps} offset:{L_XS+ks*2048+512}"); o.append(tk[ks, ps])
            return o
        main = yrd(0) + yrd(1)
        for ks in range(8):
            for ps in range(2):
                main.append(Wait(tk[ks, ps]))
                for o in range(2):
                    d = acc + 32 * ps + 16 * o
                    main.append(I(f"{MF} {vr(d,16)}, {vr(fi+8*ks+4*o,4)}, {vr(yb+8*(ks%3)+4*ps,4)}, {'0' if ks == 0 else vr(d,16)}"))
                if ps == 0 and ks + 2 < 8: main += yrd(ks + 2)
        xw = V.alloc(3, align=1); xr = V.alloc(3, align=1)
        def xaddr():
            for i, x in enumerate((2, 3, 1)):
                p(f"s_xor_b32 s{sT0}, s{sW}, {x}"); self.sc(sT1, (sT0, 14), (sW, 12), add=L_W1S); p(f"v_add_u32 v{xw+i}, s{sT1}, v{vL16}")
                self.sc(sT1, (sW, 14), (sT0, 12), add=L_W1S); p(f"v_add_u32 v{xr+i}, s{sT1}, v{vL16}")
            p(f"s_lshr_b32 s46, s{sR}, 1"); self.sc(46, (46, 9), (sW, 7), add=WS_CNT + C_S3 * 128)
        W4 = self.w4_groups(32, 56)
        def sig():
            self.signal(sV7, [self.hst]); self.stamp("sig3")
        p(sched(main, vm=W4, gap=O("gap_b3", 56), fill=p.cap(xaddr), drain_vm=False, at=[(O("t_sig3", 900), p.atom(sig))]))
        V.free(fi, 64); V.free(vty, 2); V.free(yb, 24)
        p("s_barrier")
        wr = [I(f"ds_write_b128 v{xw+i}, {vr(src+4*q,4)} offset:{q*1024}") for i, src in enumerate((acc, acc + 16, acc + 48)) for q in range(4)]
        p(sched(wr, vm=W4, gap=8))
        s3p = self.poll_issue(vpl, S_WS, "s46")
        p(WaitAll(vm=False, lgkm=True)); p("s_barrier")
        tk = [[p(f"ds_read_b128 {vr(dst+4*q,4)}, v{xr+i} offset:{q*1024}") for q in range(4)] for i, dst in enumerate((acc, acc + 16, acc + 48))]
        self.sc(sT0, (sR, 1), (sB, 0)); p(f"s_xor_b32 s{sT1}, s{sT0}, 1")
        p(f"s_mul_i32 s{sT2}, s{sW}, {28*1024}"); p(f"s_add_u32 s{sT2}, s{sT2}, {hex(WS_H2F)}")
        p(f"s_mul_i32 s{sT0}, s{sT0}, 114688"); p(f"s_mul_i32 s{sT1}, s{sT1}, 114688")
        p(f"s_add_u32 s{sV4}, s{sT0}, s{sT2}"); p(f"s_add_u32 s{sV3}, s{sT1}, s{sT2}")
        for i in range(3):
            p(f"v_add_u32 v{xw+i}, {hex((L_XS - L_W1S) & 0xffffffff)}, v{xw+i}"); p(f"v_add_u32 v{xr+i}, {hex((L_XS - L_W1S) & 0xffffffff)}, v{xr+i}")
        self.stamp("idft")
        self.poll_check(s3p, vpl, S_WS, "s46", 14, 8)
        self.stamp("poll3")
        NH = O("nh", 14)
        hb = V.alloc(4 * NH, at=192)
        hl = {}
        def hload(n):
            ps, i = divmod(n, 28); g = []
            if i & 3 == 0: g.append(I(f"s_add_u32 s{sV1}, s{sV4 if ps else sV3}, {i*1024}"))
            hl[n] = I(f"buffer_load_dwordx4 {vr(hb+4*(n%NH),4)}, v{vL16}, {sr(S_WS,4)}, s{sV1} offen" + (f" offset:{(i&3)*1024}" if i & 3 else "") + " sc1")
            return g + [hl[n]]
        sadd = [Wait(tk[1][3])] + [I(f"v_pk_add_f32 {vr(acc+2*i,2)}, {vr(acc+2*i,2)}, {vr(acc+16+2*i,2)}") for i in range(8)]
        sadd += [Wait(tk[2][3])] + [I(f"v_pk_add_f32 {vr(acc+32+2*i,2)}, {vr(acc+32+2*i,2)}, {vr(acc+48+2*i,2)}") for i in range(8)]
        sadd += [I(f"v_pk_add_f32 {vr(vs+2*i,2)}, {vr(acc+2*i,2)}, {vr(acc+32+2*i,2)}") for i in range(8)]
        p(sched(sadd, vm=[Atom(hload(n)) for n in range(NH)], gap=8))
        wreg = lambda n: 128 + 4 * n if n < 32 else 4 * (n - 32)
        for ps in range(2):
            main = []
            for i in range(28):
                n = 28 * ps + i
                main.append(Wait(hl[n]))
                for o in range(2):
                    d = acc + 32 * ps + 16 * o
                    main.append(I(f"{MF} {vr(d,16)}, {ar(wreg(2*i+o),4)}, {vr(hb+4*(n%NH),4)}, {'0' if i == 0 else vr(d,16)}"))
                if n + NH < 56: main += hload(n + NH)
            if ps == 0: p(main); self.stamp("g4a")
            else:
                wr = [I(f"ds_write_b128 v{xw+i}, {vr(acc+16*i+4*q,4)} offset:{q*1024}") for i in range(2) for q in range(4)]
                r2 = [[I(f"ds_read_b128 {vr((pre, acc)[i]+4*q,4)}, v{xr+i} offset:{q*1024}") for q in range(4)] for i in range(2)]
                x1f = acc + 16
                fill = wr + [Wait(wr[-1]), I("s_barrier")] + r2[0] + r2[1] + [Wait(r2[1][3])] + [I(f"v_add_f32 v{pre+r}, v{pre+r}, v{acc+r}") for r in range(16)]
                for i in range(8):
                    fill += [I(f"v_lshlrev_b32 v{x1f+2*i}, 16, v{self.vx1+i}"), I(f"v_and_b32 v{x1f+2*i+1}, 0xffff0000, v{self.vx1+i}")]
                fill += [I(f"v_add_f32 v{pre+r}, v{pre+r}, v{x1f+r}") for r in range(16)]
                xf = acc + 16
                for i in range(8):
                    fill += [I(f"v_lshlrev_b32 v{xf+2*i}, 16, v{self.vx+i}"), I(f"v_and_b32 v{xf+2*i+1}, 0xffff0000, v{self.vx+i}")]
                fill += [I(f"v_mov_b32 v{vt}, {f2h(-LOG2E)}"), I(f"v_lshl_add_u32 v{vt+2}, v{vh}, 4, v{self.vrow}")]
                p(sched(main, fill=fill, even=True, fill_start=3))
        self.stamp("gemm4")
        wl = [p(f"ds_write_b128 v{xw+2}, {vr(acc+48+4*q,4)} offset:{q*1024}") for q in range(4)]
        for i in range(8): p(f"v_pk_add_f32 {vr(pre+2*i,2)}, {vr(pre+2*i,2)}, {vr(acc+32+2*i,2)}")
        p.wait(wl[3]); p("s_barrier")
        rl = [p(f"ds_read_b128 {vr(acc+4*q,4)}, v{xr+2} offset:{q*1024}") for q in range(4)]
        u = pre; e = acc + 32; ob = acc + 48
        for hf in range(2):
            R4 = range(4 * hf, 4 * hf + 4); R8 = range(8 * hf, 8 * hf + 8)
            p.wait(rl[2 * hf + 1])
            for i in R4: p(f"v_pk_add_f32 {vr(u+2*i,2)}, {vr(u+2*i,2)}, {vr(acc+2*i,2)}")
            for i in R4: p(f"v_pk_mul_f32 {vr(e+2*i,2)}, {vr(u+2*i,2)}, {vr(vt,2)} op_sel_hi:[1,0]")
            for i in R8: p(f"v_exp_f32 v{e+i}, v{e+i}")
            for i in R4: p(f"v_pk_mul_f32 {vr(u+2*i,2)}, {vr(u+2*i,2)}, {vr(vs+2*i,2)}")
            for i in R4: p(f"v_pk_add_f32 {vr(e+2*i,2)}, {vr(e+2*i,2)}, 1.0 op_sel_hi:[1,0]")
            for i in R8: p(f"v_rcp_f32 v{e+i}, v{e+i}")
            for i in R4: p(f"v_pk_fma_f32 {vr(u+2*i,2)}, {vr(u+2*i,2)}, {vr(e+2*i,2)}, {vr(xf+2*i,2)}")
            for i in R4: p(f"v_cvt_pk_bf16_f32 v{ob+i}, v{u+2*i}, v{u+2*i+1}")
            b0 = ob + 4 * hf
            p(f"v_permlane32_swap_b32 v{b0}, v{b0+2}"); p(f"v_permlane32_swap_b32 v{b0+1}, v{b0+3}")
            p(f"buffer_store_dwordx4 {vr(b0,4)}, v{vt+2}, {sr(S_OUT,4)}, 0 offen" + (" offset:32" if hf else ""))
        self.stamp("end")

    def finish(self):
        p = self.p; vt = self.vt
        if self.diag:
            p(WaitAll())
            self.stamp("drained")
            p(WaitAll())
            n = len(self.stamps)
            p(f"s_lshl_b32 s{sT0}, s2, 2"); p(f"s_add_u32 s{sT0}, s{sT0}, s{sW}"); p(f"s_lshl_b32 s{sT0}, s{sT0}, 7"); p(f"s_add_u32 s{sT0}, s{sT0}, {hex(WS_STAMP)}")
            p("s_mov_b64 exec, 1")
            for i in range(n):
                p(f"v_mov_b32 v{vt}, s{STAMP0+2*i}")
                p(f"buffer_store_dword v{vt}, off, {sr(S_WS,4)}, s{sT0} offset:{4*i}")
            if self.opt.get("dbgst"):
                p(f"s_lshl_b32 s{sT1}, s{sW}, 8"); p(f"s_add_u32 s{sT1}, s{sT1}, s2"); p(f"s_cmp_eq_u32 s{sT1}, 100"); p(f"s_cselect_b32 s{sT1}, 0, {hex(OOB)}")
                p(f"v_mov_b32 v{vt+1}, s{sT1}")
                for i in range(1, n):
                    p(f"s_sub_u32 s{sT2}, s{STAMP0+2*i}, s{STAMP0}"); p(f"v_mov_b32 v{vt}, s{sT2}")
                    p(f"buffer_store_dword v{vt}, v{vt+1}, {sr(S_DBG,4)}, 0 offen offset:{4*i}")
            p(f"v_mov_b32 v{vt}, s{sERR}")
            p(f"buffer_store_dword v{vt}, off, {sr(S_WS,4)}, s{sT0} offset:124")
        p.label("L_end")
        p("s_endpgm")
        p.label("L_code_end")
        p.resolve(); p.hazards()
        hdr = open(os.path.join(os.path.dirname(os.path.abspath(__file__)), "header.txt")).read()
        src = hdr + "; @launch grid=(256,1,1) block=(256,1,1) lds=163840\n"
        src += '.amdgcn_target "amdgcn-amd-amdhsa--gfx950"\n.text\n' + f".globl {KNAME}\n.p2align 8\n.type {KNAME},@function\n"
        src += p.text()
        src += f""".section .rodata,"a"
.p2align 6
.amdhsa_kernel {KNAME}
  .amdhsa_next_free_vgpr 512
  .amdhsa_next_free_sgpr 102
  .amdhsa_accum_offset 256
  .amdhsa_group_segment_fixed_size 0
  .amdhsa_kernarg_size 88
  .amdhsa_user_sgpr_count 2
  .amdhsa_user_sgpr_kernarg_segment_ptr 1
  .amdhsa_system_sgpr_workgroup_id_x 1
.end_amdhsa_kernel
"""
        return src

if __name__ == "__main__":
    import argparse, json
    ap = argparse.ArgumentParser()
    ap.add_argument("-o", default="k.s"); ap.add_argument("--diag", action="store_true"); ap.add_argument("--stop", type=int, default=99)
    ap.add_argument("--st", default=None); ap.add_argument("--opt", default="")
    a = ap.parse_args()
    opt = dict((kv.split("=")[0], int(kv.split("=")[1])) for kv in a.opt.split(",") if kv)
    g = Gen(diag=a.diag, stop=a.stop, want=(a.st.split(",") if a.st else None), opt=opt)
    src = g.build()
    open(a.o, "w").write(src)
    json.dump(g.stamps, open(a.o + ".stamps", "w"))
    print("vgpr high water", g.V.hw, "lines", src.count("\n"), "stamps", g.stamps)
```
